```python
import torch

def _softmax(x, axis=-1):
    return torch.softmax(x, dim=axis)
def _gelu(x):
    return torch.nn.functional.gelu(x, approximate="tanh")
def _silu(x):
    return torch.nn.functional.silu(x)
def _sigmoid(x):
    return torch.sigmoid(x)
def _layernorm(x, axis=-1, eps=1e-5):
    m = x.mean(dim=axis, keepdim=True)
    v = x.var(dim=axis, keepdim=True, unbiased=False)
    return (x - m) / torch.sqrt(v + eps)
def _scatter_add(tgt, idx, src, axis=0):
    return tgt.clone().index_add_(axis, idx, src)
def _segment_sum(src, seg, n):
    out = torch.zeros((n,) + src.shape[1:], dtype=src.dtype)
    return out.index_add_(0, seg, src)
def _pad(x, pw):
    flat = tuple(v for pair in reversed(pw) for v in pair)
    return torch.nn.functional.pad(x, flat)

kernel_name = 'standalone__deep_cross_pnn__recsys'

def setup_inputs():

    _w = (lambda a: (lambda t: t.to(torch.bfloat16) if t.is_floating_point() else t)(torch.as_tensor(a)))
    B, F, D, V = 16384, 100, 32, min(1000000, 100000)
    H = 4 * D
    return {
        "idx": _w((lambda lo, hi, *s: torch.randint(lo, hi, s))(0, V, B, F).to(torch.int64)),
        "table": _w((lambda *s: torch.randn(*s, dtype=torch.bfloat16) * 1.6)(V, D) * (D ** -0.5)),
        "w_p": _w((lambda *s: torch.randn(*s, dtype=torch.bfloat16) * 0.05)(F * F) * ((F * F) ** -0.5)),
        "w1": _w((lambda *s: torch.randn(*s, dtype=torch.bfloat16) * 1.6)(F * D, H) * ((F * D) ** -0.5)),
        "b1": _w((lambda *s: torch.randn(*s, dtype=torch.bfloat16) * 1.6)(H) * 0.01),
        "w2": _w((lambda *s: torch.randn(*s, dtype=torch.bfloat16) * 0.05)(H) * (H ** -0.5)),
        "b2": _w((lambda *s: torch.randn(*s, dtype=torch.bfloat16) * 0.05)(1) * 0.01),
    }

def reference(idx, table, w_p, w1, b1, w2, b2):
    emb = table[idx]
    B = emb.shape[0]; F = emb.shape[1]; D = emb.shape[2]
    ip = torch.einsum('bid,bjd->bij', emb, emb)
    ip = ip.reshape(B, F * F)
    logit_p = ip @ w_p
    z = emb.reshape(B, F * D)
    h = _gelu(z @ w1 + b1)
    logit_d = h @ w2 + b2
    return logit_p + logit_d
```

```python
KN = "standalone__deep_cross_pnn__recsys_kernel"
HEADER = """; Kernarg layout for this problem (80 bytes, ptrs only, base s[0:1]):
"""
class Asm:
    def __init__(self):
        self.lines = []
    def __call__(self, s):
        for l in s.split("\n"):
            l = l.strip()
            if l: self.lines.append(("" if l.endswith(":") else "  ") + l)
    def text(self): return "\n".join(self.lines) + "\n"

def kernel_begin(a, name):
    a(f".globl {name}")
    a(".p2align 8")
    a(f".type {name},@function")
    a(f"{name}:")

def descriptor(name, vgpr, accum, sgpr=102):
    return f""".p2align 6
.amdhsa_kernel {name}
  .amdhsa_next_free_vgpr {vgpr}
  .amdhsa_next_free_sgpr {sgpr}
  .amdhsa_accum_offset {accum}
  .amdhsa_group_segment_fixed_size 0
  .amdhsa_kernarg_size 80
  .amdhsa_user_sgpr_count 2
  .amdhsa_user_sgpr_kernarg_segment_ptr 1
  .amdhsa_system_sgpr_workgroup_id_x 1
  .amdhsa_float_denorm_mode_32 3
.end_amdhsa_kernel
"""
def srd(a, d, b, nbytes):
    a(f"s_mov_b32 s{d}, s{b}")
    a(f"s_and_b32 s{d+1}, s{b+1}, 0xffff")
    a(f"s_mov_b32 s{d+2}, {nbytes}")
    a(f"s_mov_b32 s{d+3}, 0x00020000")

def file_text(launches, body, descs):
    s = HEADER
    for l in launches: s += l + "\n"
    s += '.amdgcn_target "amdgcn-amd-amdhsa--gfx950"\n.text\n'
    s += body
    s += '.section .rodata,"a"\n'
    for d in descs: s += d
    return s
```

```python
import re
REG = re.compile(r"^(-?)(abs\()?([vas])(\d+)\)?$|^([vas])\[(\d+):(\d+)\]$")
def regs_of(op):
    op = op.strip()
    if op in ("vcc",): return ["vcc"]
    if op in ("vcc_lo", "vcc_hi"): return ["vcc"]
    if op in ("exec", "exec_lo", "exec_hi"): return ["exec"]
    if op == "m0": return ["m0"]
    m = REG.match(op)
    if not m: return []
    if m.group(3): return [m.group(3) + m.group(4)]
    return [m.group(5) + str(i) for i in range(int(m.group(6)), int(m.group(7)) + 1)]
TRANS = ("v_exp_f32", "v_log_f32", "v_rcp_f32", "v_rsq_f32", "v_sqrt_f32", "v_sin_f32", "v_cos_f32")
class Emit:
    def __init__(self):
        self.lines = []; self.pos = 0
        self.vm_n = 0; self.vm_done = 0; self.lg_n = 0; self.lg_done = 0
        self.tags = {}
        self.mfma_w = {}
        self.mfma_c = {}
        self.valu_w = {}
        self.trans_w = {}
        self.valu_sw = {}
        self.salu_m0 = -99
        self.store_data = {}
        self.nops = 0
        self.counts = {}
    def raw(self, s): self.lines.append(s)
    def label(self, s): self.lines.append(s + ":")
    def comment(self, s): self.lines.append("  ; " + s)
    def nop(self, n):
        while n > 0:
            k = min(n, 16); self.lines.append(f"  s_nop {k-1}"); self.pos += k; n -= k; self.nops += k
    def parse(self, s):
        s = s.split(";")[0].strip()
        mn, _, rest = s.partition(" ")
        ops = [o.strip() for o in re.split(r",(?![^\[]*\])", rest)] if rest else []
        if ops:
            last = ops[-1].split()
            ops[-1] = last[0]; mods = last[1:]
        else: mods = []
        return mn, ops, mods
    def __call__(self, text, tag=None):
        for s in text.split("\n"):
            s = s.strip()
            if not s: continue
            if s.endswith(":"): self.label(s[:-1]); continue
            self.ins(s, tag)
    def ins(self, s, tag=None):
        mn, ops, mods = self.parse(s)
        R = [regs_of(o) for o in ops]
        rd, wr = [], []
        kind = "other"; need = 0
        def dist_req(p, req):
            return max(0, req - (self.pos - p - 1))
        ismfma = mn.startswith("v_mfma")
        isvalu = mn.startswith("v_") and not ismfma
        isds = mn.startswith("ds_"); isvm = mn.startswith(("buffer_", "global_"))
        islds_dma = isvm and "lds" in mods or mn.startswith("global_load_lds")
        if ismfma:
            wr = R[0]; rdAB = R[1] + R[2]; rdC = R[3]; rd = rdAB + rdC
            passes = 8 if "32x32x16" in mn else 4 if "16x16x32" in mn else None
            assert passes
            for r in rdAB:
                if r in self.mfma_w: p, ps, _ = self.mfma_w[r]; need = max(need, dist_req(p, {4: 8, 8: 12}[ps]))
            for r in rdC:
                if r in self.mfma_w:
                    p, ps, d = self.mfma_w[r]
                    if d == tuple(rdC) and ps == passes: pass
                    else: need = max(need, dist_req(p, {4: 6, 8: 10}[ps]))
            for r in wr:
                if r in self.mfma_w and r not in rdC:
                    p, ps, d = self.mfma_w[r]
                    if not (d == tuple(wr) and ps == passes): need = max(need, dist_req(p, {4: 8, 8: 12}[ps]))
            for r in rd:
                if r in self.valu_w: need = max(need, dist_req(self.valu_w[r], 2))
            if "exec" in self.valu_sw: need = max(need, dist_req(self.valu_sw["exec"], 4))
        elif isvalu:
            if mn.startswith("v_cmpx"): wr = R[0] + ["exec"]; rd = sum(R[1:], [])
            elif "swap" in mn: wr = R[0] + R[1]; rd = wr
            elif mn.startswith(("v_fmac", "v_dot2c")): wr = R[0]; rd = sum(R, [])
            elif mn.startswith(("v_add_co", "v_addc_co", "v_sub_co")): wr = R[0] + R[1]; rd = sum(R[2:], [])
            else: wr = R[0]; rd = sum(R[1:], [])
            isdpp = "_dpp" in mn
            if isdpp and any(m.startswith("bank_mask") and m != "bank_mask:0xf" for m in mods): rd = rd + wr
            if mn.startswith("v_cndmask") and len(ops) == 3: rd = rd + ["vcc"]
            for r in rd + wr:
                if r in self.mfma_w: p, ps, _ = self.mfma_w[r]; need = max(need, dist_req(p, {4: 8, 8: 12}[ps]))
            for r in wr:
                if r in self.mfma_c: p, ps = self.mfma_c[r]; need = max(need, dist_req(p, {4: 3, 8: 7}[ps]))
                if r in self.store_data: need = max(need, dist_req(self.store_data[r], 2))
            vsrc = [r for r in rd if r[0] in "va" and r != "vcc"]
            if isdpp or "permlane" in mn:
                for r in vsrc:
                    if r in self.valu_w: need = max(need, dist_req(self.valu_w[r], 2))
                if isdpp and "exec" in self.valu_sw: need = max(need, dist_req(self.valu_sw["exec"], 5))
            if mn.startswith(("v_readlane", "v_readfirstlane")):
                for r in vsrc:
                    if r in self.valu_w: need = max(need, dist_req(self.valu_w[r], 1))
                if "exec" in self.valu_sw: need = max(need, dist_req(self.valu_sw["exec"], 4))
            if mn not in TRANS:
                for r in vsrc:
                    if r in self.trans_w: need = max(need, dist_req(self.trans_w[r], 1))
            for r in rd:
                if (r[0] == "s" or r == "vcc") and r in self.valu_sw: need = max(need, dist_req(self.valu_sw[r], 2))
        elif isds:
            if mn.startswith("ds_read"): wr = R[0]; rd = sum(R[1:], [])
            else: rd = sum(R, [])
        elif isvm:
            if islds_dma: rd = sum(R, []); need = max(need, dist_req(self.salu_m0, 1))
            elif "_load" in mn: wr = R[0]; rd = sum(R[1:], [])
            elif "atomic" in mn: rd = sum(R, []);
            else: rd = sum(R, [])
            for r in rd:
                if r[0] == "s" and r in self.valu_sw: need = max(need, dist_req(self.valu_sw[r], 5))
        if isds or isvm:
            for r in rd + wr:
                if r in self.mfma_w: p, ps, _ = self.mfma_w[r]; need = max(need, dist_req(p, {4: 8, 8: 12}[ps]))
            for r in wr:
                if r in self.mfma_c: p, ps = self.mfma_c[r]; need = max(need, dist_req(p, {4: 3, 8: 7}[ps]))
                if r in self.store_data: need = max(need, dist_req(self.store_data[r], 1))
        if need: self.nop(need)
        self.lines.append("  " + s)
        p = self.pos
        if mn == "s_nop": self.pos += int(ops[0]) + 1
        else: self.pos += 1
        self.counts[mn] = self.counts.get(mn, 0) + 1
        if ismfma:
            for r in wr: self.mfma_w[r] = (p, passes, tuple(wr)); self.valu_w.pop(r, None)
            for r in rdC: self.mfma_c[r] = (p, passes)
        else:
            for r in wr: self.mfma_w.pop(r, None)
        if isvalu:
            for r in wr:
                if r[0] in "va" and r != "vcc":
                    self.valu_w[r] = p
                    if mn in TRANS: self.trans_w[r] = p
                    else: self.trans_w.pop(r, None)
                else: self.valu_sw[r] = p
        if mn.startswith("s_") and ops and "m0" in R[0] and not mn.startswith("s_cmp"): self.salu_m0 = p
        if isvm and "_store" in mn and ("x4" in mn or "x3" in mn):
            data = R[0] if mn.startswith("buffer") else R[1]
            for r in data: self.store_data[r] = p
        if isvm:
            self.vm_n += 1
            if tag is not None: self.tags[tag] = ("vm", self.vm_n)
        if isds:
            self.lg_n += 1
            if tag is not None: self.tags[tag] = ("lg", self.lg_n)
    def need(self, *tags):
        vm = lg = None
        for t in tags:
            k, n = self.tags[t]
            if k == "vm" and n > self.vm_done: vm = max(vm or 0, n)
            if k == "lg" and n > self.lg_done: lg = max(lg or 0, n)
        parts = []
        if vm is not None:
            c = min(63, self.vm_n - vm); parts.append(f"vmcnt({c})"); self.vm_done = self.vm_n - c
        if lg is not None:
            c = min(15, self.lg_n - lg); parts.append(f"lgkmcnt({c})"); self.lg_done = self.lg_n - c
        if parts: self.ins("s_waitcnt " + " ".join(parts))
    def drain(self, vm=True, lg=True):
        parts = []
        if vm: parts.append("vmcnt(0)"); self.vm_done = self.vm_n
        if lg: parts.append("lgkmcnt(0)"); self.lg_done = self.lg_n
        self.ins("s_waitcnt " + " ".join(parts))
    def text(self): return "\n".join(self.lines) + "\n"
```

```python
import sys, struct
from collections import deque
from asmlib import HEADER, KN, descriptor, file_text
from emit import Emit

FS = 4128; BUF = 16 * FS; U_BASE = 2 * BUF; W2_LDS = U_BASE + 28 * 1024
MP_LDS = W2_LDS + 256; PP_LDS = MP_LDS + 1024; LDS_SIZE = PP_LDS + 256
WSTRIDE = 205824; WS_U = 4 * WSTRIDE; WS_SIZE = WS_U + 28 * 1024
NPROD_W = 50; NPROD = 57
STAMP_OFF = 128 << 20
def f2u(x): return struct.unpack("<I", struct.pack("<f", x))[0]
LOG2E = 1.4426950408889634
C1 = 2 * 0.7978845608028654
K1 = -C1 * LOG2E; K2 = -C1 * 0.044715 * LOG2E

def q4(p, b): return f"{p}[{b}:{b+3}]"
def E(s, q): return q4("a", (q * 16 + s) * 4) if q < 4 else q4("v", 192 + 4 * s)
def Dq(n): return 36 + 4 * (n % 3)
def T5q(s): return 48 + 4 * (s & 1)
def Uq(T): return 64 + 4 * (T % 8)
def Aq(f, h, t): return 96 + 16 * (f & 1) + 8 * h + 4 * t
def Wq(j): return 128 + 4 * (j % 8)
ACC = 160
def PACC(s): return 17 + s
def IDX(f):
    if f < 80: return 192 + (f // 16) * 4 + (f % 4), (f % 16) // 4
    if f < 96: return 12 + (f % 4), (f % 16) // 4
    return 16, f - 96
def Tidx(q, p): return p * (p + 1) // 2 + q

def srd(e, d, b, nbytes):
    e(f"s_mov_b32 s{d}, s{b}\ns_and_b32 s{d+1}, s{b+1}, 0xffff\ns_mov_b32 s{d+2}, {nbytes}\ns_mov_b32 s{d+3}, 0x00020000")

def producer(e, cfg, pfx):
    sc = " sc0 sc1" if cfg["fused"] else ""
    e(f"s_cmp_ge_u32 s2, {NPROD_W}\ns_cbranch_scc1 {pfx}_u")
    srd(e, 36, 10, 819200)
    e("v_lshrrev_b32 v96, 5, v0\nv_lshlrev_b32 v96, 11, v96\nv_and_b32 v97, 31, v0\nv_lshl_add_u32 v96, v97, 1, v96")
    e("s_lshl_b32 s45, s40, 6\nv_add_u32 v96, s45, v96\ns_lshl_b32 s45, s2, 14")
    for k in range(4):
        for x in range(8):
            e(f"buffer_load_ushort v{128+8*k+x}, v96, s[36:39], s45 offen offset:{256*x}", tag=("raw", k))
        if k < 3: e("s_add_u32 s45, s45, 4096")
    e(f"s_mul_i32 s45, s40, {WSTRIDE}\ns_lshl_b32 s46, s2, 12\ns_add_u32 s45, s45, s46\nv_lshlrev_b32 v97, 4, v0")
    for k in range(4):
        e.need(("raw", k))
        for x in range(4):
            e(f"v_lshl_or_b32 v{100+4*k+x}, v{128+8*k+2*x+1}, 16, v{128+8*k+2*x}")
        e(f"buffer_store_dwordx4 {q4('v',100+4*k)}, v97, s[32:35], s45 offen offset:{1024*k}{sc}")
    e(f"s_branch {pfx}_done")
    e.label(f"{pfx}_u")
    e.vm_done = e.vm_n
    srd(e, 36, 8, 20000)
    e(f"s_sub_u32 s45, s2, {NPROD_W}\ns_lshl_b32 s45, s45, 2\ns_add_u32 s45, s45, s40   ; tile T")
    e("s_mov_b32 s46, s45\ns_mov_b32 s47, 0")
    e.label(f"{pfx}_pl")
    e(f"s_cmp_le_u32 s46, s47\ns_cbranch_scc1 {pfx}_pd\ns_add_u32 s47, s47, 1\ns_sub_u32 s46, s46, s47\ns_branch {pfx}_pl")
    e.label(f"{pfx}_pd")
    e("s_cmp_eq_u32 s47, 6\ns_cselect_b32 s48, 3, 15\nv_and_b32 v96, s48, v0\ns_lshl_b32 s48, s47, 4\nv_add_u32 v96, s48, v96")
    e("s_cmp_eq_u32 s46, 6\ns_cselect_b32 s48, 0, 12\nv_lshrrev_b32 v97, 2, v0\nv_and_b32 v97, s48, v97\ns_lshl_b32 s48, s46, 4\nv_add_u32 v97, s48, v97")
    e("v_mul_u32_u24 v98, 200, v97\nv_lshl_add_u32 v98, v96, 1, v98")
    e("v_mul_u32_u24 v99, 200, v96\nv_lshl_add_u32 v99, v97, 1, v99")
    e("s_cmp_eq_u32 s46, s47\ns_cselect_b32 s48, 0x100000, 0\nv_add_u32 v99, s48, v99   ; diagonal tile: no transposed part")
    for r in range(4): e(f"buffer_load_ushort v{128+r}, v98, s[36:39], 0 offen offset:{200*r}", tag="ua")
    for r in range(4): e(f"buffer_load_ushort v{132+r}, v99, s[36:39], 0 offen offset:{2*r}", tag="ub")
    e(f"s_lshl_b32 s45, s45, 10\ns_add_u32 s45, s45, {WS_U}\nv_lshlrev_b32 v97, 4, v0")
    e.need("ua", "ub")
    for r in range(8): e(f"v_lshlrev_b32 v{128+r}, 16, v{128+r}")
    for r in range(4): e(f"v_add_f32 v{100+r}, v{128+r}, v{132+r}")
    e(f"buffer_store_dwordx4 v[100:103], v97, s[32:35], s45 offen{sc}")
    e.label(f"{pfx}_done")

def stamp(e, cfg, k):
    if cfg["stamps"]: e(f"{'s_memtime' if cfg['stamps']==2 else 's_memrealtime'} s[{80+2*k}:{81+2*k}]")

def gen_main(cfg):
    e = Emit()
    fused = cfg["fused"]; sc1 = " sc1" if fused else ""
    e.label("L_start")
    e("s_cmp_ge_u32 s2, 256\ns_cbranch_scc1 L_end")
    e("s_load_dwordx16 s[4:19], s[0:1], 0\ns_load_dwordx4 s[20:23], s[0:1], 64")
    stamp(e, cfg, 0)
    e("v_lshrrev_b32 v9, 6, v0\nv_and_b32 v0, 63, v0\nv_readfirstlane_b32 s40, v9")
    e("v_lshrrev_b32 v2, 2, v0\nv_and_b32 v3, 3, v0\nv_mul_u32_u24 v8, 400, v2\nv_lshl_add_u32 v9, v3, 2, v8\nv_lshl_add_u32 v8, v3, 4, v8")
    e("s_lshl_b32 s41, s40, 10\ns_lshl_b32 s42, s2, 6\ns_lshl_b32 s45, s40, 4\ns_add_u32 s42, s42, s45\ns_mul_i32 s42, s42, 400")
    e("s_waitcnt lgkmcnt(0)")
    srd(e, 24, 4, 6553600)
    for m in range(6):
        d = 192 + 4 * m if m < 5 else 12
        e(f"buffer_load_dwordx4 {q4('v', d)}, v8, s[24:27], s42 offen offset:{64*m} nt", tag=("idx", m))
    e("buffer_load_dword v16, v9, s[24:27], s42 offen offset:384 nt", tag=("idx", 6))
    srd(e, 28, 6, 6400000); srd(e, 32, 22, WS_SIZE)
    if fused:
        e(f"s_cmp_ge_u32 s2, {NPROD}\ns_cbranch_scc1 L_noprod")
        save = (e.vm_n, e.vm_done)
        producer(e, cfg, "L_pr")
        e("s_waitcnt vmcnt(0)\ns_barrier")
        e("s_cmp_lg_u32 s40, 0\ns_cbranch_scc1 L_noprod")
        e("s_lshl_b32 s45, s2, 2\nv_mov_b32 v96, s45\nv_mov_b32 v97, 1")
        e("global_store_dword v96, v97, s[20:21] sc0 sc1")
        e.label("L_noprod")
        e("s_nop 1")
        e.vm_n, e.vm_done = save
    if cfg["codepf"]:
        e("s_getpc_b64 s[46:47]")
        e.label("L_pc")
        e("s_sub_u32 s46, s46, L_pc-L_start\ns_subb_u32 s47, s47, 0")
        e("s_lshl_b32 s45, s40, 13\nv_lshl_add_u32 v2, v0, 7, s45\nv_min_u32 v2, L_codeend-L_start-4, v2")
        e("global_load_dword v108, v2, s[46:47]", tag="pf")
    e("v_lshrrev_b32 v10, 5, v0\nv_lshlrev_b32 v10, 3, v10\ns_lshl_b32 s45, s40, 6\nv_add_u32 v33, s45, v10")
    for i in range(4): e(f"global_load_dwordx2 v[{96+2*i}:{97+2*i}], v33, s[12:13] offset:{16*i}", tag="b1")
    e("v_mov_b32 v10, 0\nglobal_load_ushort v35, v10, s[16:17]", tag="b2")
    e(f"s_mov_b32 m0, {W2_LDS}\nv_lshlrev_b32 v10, 2, v0\nglobal_load_lds_dword v10, s[14:15]", tag="w2")
    e("v_and_b32 v2, 3, v0\nv_lshrrev_b32 v7, 4, v0\nv_xor_b32 v1, v2, v7\nv_lshlrev_b32 v1, 4, v1")
    e("v_lshlrev_b32 v4, 4, v0")
    e("v_and_b32 v5, 1, v7\nv_lshlrev_b32 v5, 10, v5\nv_and_b32 v11, 15, v0\nv_lshl_add_u32 v5, v11, 6, v5")
    e("v_lshrrev_b32 v6, 2, v0\nv_and_b32 v6, 3, v6\nv_lshrrev_b32 v8, 5, v0\nv_xor_b32 v6, v6, v8\nv_lshl_add_u32 v5, v6, 4, v5\nv_xor_b32 v6, 32, v5")
    e("v_lshlrev_b32 v7, 4, v7")
    e(f"v_mul_u32_u24 v11, {FS}, v11\nv_add_u32 v11, s41, v11")
    e(f"v_mul_u32_u24 v34, {FS}, v2\nv_add_u32 v34, s41, v34")
    e(f"v_add_u32 v10, {U_BASE}, v4")
    e(f"s_mul_i32 s43, s40, {WSTRIDE}")
    for s in range(16): e(f"v_mov_b32 v{PACC(s)}, 0")
    shifted = set()
    def shift_idx(m):
        if m in shifted: return
        shifted.add(m)
        e.need(("idx", m))
        if m == 6: e("v_lshlrev_b32 v16, 6, v16"); return
        d = 192 + 4 * m if m < 5 else 12
        for k in range(4): e(f"v_lshlrev_b32 v{d+k}, 6, v{d+k}")
    def G(f):
        shift_idx(f // 16)
        r, j = IDX(f); t = 2 + (f & 1)
        e(f"s_add_u32 m0, s41, {((f//16)&1)*BUF + (f%16)*FS}")
        e(f"v_add_u32_dpp v{t}, v{r}, v1 quad_perm:[{j},{j},{j},{j}] row_mask:0xf bank_mask:0xf")
        e(f"buffer_load_dwordx4 v{t}, s[28:31], 0 offen lds", tag=("G", f))
    def W(j):
        e(f"buffer_load_dwordx4 {q4('v', Wq(j))}, v4, s[32:35], s43 offen offset:{(j%4)*1024}{sc1}", tag=("W", j))
        if j % 4 == 3: e("s_add_u32 s43, s43, 4096")
    def Udma():
        e(f"s_add_u32 s45, s41, {WS_U}")
        for k in range(7):
            e(f"s_add_u32 m0, s41, {U_BASE + 4096*k}")
            e(f"buffer_load_dwordx4 v4, s[32:35], s45 offen{sc1} lds", tag="Udma")
            if k < 6: e("s_add_u32 s45, s45, 4096")
    shift_idx(0)
    stamp(e, cfg, 1)
    for f in range(16): G(f)
    if not fused:
        Udma()
        for j in range(8): W(j)
        for f in range(16, 32): G(f)
    else:
        e("v_lshlrev_b32 v8, 2, v0\ns_mov_b32 s48, 0\ns_mov_b32 s49, 0xfe000000")
        for k in range(4):
            for f in range(16 + 4 * k, 20 + 4 * k): G(f)
            e(f"global_load_dword v{104+k}, v8, s[20:21] sc1", tag=("poll", k))
        for k in range(4):
            e.need(("poll", k))
            e(f"v_cmp_ne_u32 vcc, 0, v{104+k}\ns_nop 0\ns_or_b64 vcc, vcc, s[48:49]\ns_cmp_eq_u64 vcc, -1\ns_cbranch_scc1 L_ready")
        e.vm_done = 0
        e("s_mov_b32 s45, 0")
        e.label("L_spin")
        e.lines.append("  global_load_dword v104, v8, s[20:21] sc1\n  s_add_u32 s45, s45, 1\n  s_waitcnt vmcnt(0)\n  v_cmp_ne_u32 vcc, 0, v104\n  s_nop 0\n  s_or_b64 vcc, vcc, s[48:49]\n  s_cmp_eq_u64 vcc, -1\n  s_cbranch_scc1 L_ready\n  s_cmp_lt_u32 s45, 0x40000\n  s_cbranch_scc1 L_spin")
        e.label("L_ready")
        e("s_nop 1")
        stamp(e, cfg, 2)
        Udma()
        for j in range(8): W(j)
    e.need("b1", "b2", "w2")
    for i in range(4):
        for k in range(2):
            r = ACC + 4 * i + 2 * k
            e(f"v_lshlrev_b32 v{r}, 16, v{96+2*i+k}\nv_and_b32 v{r+1}, 0xffff0000, v{96+2*i+k}")
            e(f"v_mov_b32 v{r+16}, v{r}\nv_mov_b32 v{r+17}, v{r+1}")
    e("v_lshlrev_b32 v35, 16, v35")
    e(f"v_mov_b32 v33, {hex(f2u(K2))}")
    for m in range(1, 7): shift_idx(m)
    e.need(("G", 15), "Udma")
    e("s_barrier")
    if not fused: stamp(e, cfg, 2)

    def Ard(f):
        return [(f"ds_read_b128 {q4('v', Aq(f,h,t))}, v{5+h} offset:{(f%16)*FS + t*2048}", ("A", f, h, t)) for h in range(2) for t in range(2)]
    def Prd(p, s):
        ops = []
        if s % 4 == 0: ops.append((f"v_xad_u32 v8, v7, {(s>>2)<<4}, v11", None))
        dst = E(s, p) if p < 5 else q4("v", T5q(s))
        ops.append((f"ds_read_b128 {dst}, v8 offset:{s*64}", ("P", p, s)))
        return ops
    def Urd(T): return (f"ds_read_b128 {q4('v', Uq(T))}, v10 offset:{T*1024}", ("U", T))
    side = deque(); fm = deque(); tile_n = [0]; nextU = [0]; deadU = set()
    def pump_U():
        while nextU[0] < 28 and (nextU[0] < 8 or (nextU[0] - 8) in deadU):
            side.append(Urd(nextU[0])); nextU[0] += 1
    def emit_side():
        it = side.popleft()
        if callable(it): it(); return 12
        e(it[0], tag=it[1]); return 4.5
    def fm_ready():
        return fm and (e.pos - fm[0]["pos"] - 1) >= 8
    def emit_fm():
        t = fm[0]; k = t["k"]
        if k == 0: e.need(("U", t["T"]))
        op = "v_mul_f32" if (t["init"] and k == 0) else "v_fmac_f32"
        e(f"{op} v{t['acc']}, v{t['D']+k}, v{Uq(t['T'])+k}")
        t["k"] += 1
        if t["k"] == 4:
            fm.popleft()
            if t["last"]: deadU.add(t["T"]); pump_U()
        return 4.6
    extra = deque()
    def fill(budget):
        while budget > 0:
            if side: budget -= emit_side()
            elif fm_ready(): budget -= emit_fm()
            elif extra: e(extra.popleft()); budget -= 4.6
            else: break
    def flush_fm(upto):
        while fm and fm[0]["n"] <= upto: emit_fm()
    def flush_side():
        while side: emit_side()
    def Pm(A, B, Cin, T, acc, last, init=False, push=True):
        n = tile_n[0]
        flush_fm(n - 3)
        d = q4("v", Dq(n))
        e(f"v_mfma_f32_16x16x32_bf16 {d}, {A}, {B}, {d if Cin else 0}")
        if push:
            fm.append(dict(n=n, pos=e.pos - 1, k=0, D=Dq(n), T=T, acc=acc, last=last, init=init)); tile_n[0] += 1
    def Mm(f, h, t):
        c = f"v[{ACC+16*t}:{ACC+16*t+15}]"
        e.need(("A", f, h, t), ("W", 2 * f + h))
        e(f"v_mfma_f32_32x32x16_bf16 {c}, {q4('v', Wq(2*f+h))}, {q4('v', Aq(f,h,t))}, {c}")
    gpos = cfg["gpos"]
    gsched = {}
    for p in range(2, 7):
        for k, f in enumerate(range(16 * p, min(100, 16 * p + 16))):
            gsched.setdefault(16 * (p - 1) + gpos[k], []).append(f)
    pump_U(); side.extend(Prd(0, 0)); side.extend(Ard(0)); flush_side()
    for f in range(96):
        p, i = divmod(f, 16)
        if i == 15:
            e.need(*[("A", f, h, t) for h in range(2) for t in range(2)], ("P", p, 15))
            e.need(("G", min(99, 16 * p + 31)))
            e("s_barrier")
            d = BUF if p % 2 == 0 else -BUF
            op = "v_add_u32" if d > 0 else "v_subrev_u32"
            e(f"{op} v5, {BUF}, v5\n{op} v6, {BUF}, v6")
            if p < 5: e(f"{op} v11, {BUF}, v11")
            if cfg["stamps"] and p in cfg["stamp_stages"]: stamp(e, cfg, 3 + cfg["stamp_stages"].index(p))
        if f < 95: side.extend(Prd(p + (i == 15), (i + 1) % 16))
        side.extend(Ard(f + 1))
        gl = gsched.get(f, [])
        if i == 15: gl = [g for g in gsched.get(f, [])]
        for g in gl: side.append(lambda g=g: G(g))
        seq = [((k + 0.0) / 4, "M", k) for k in range(4)] + [((q + 0.5) / (p + 1), "P", q) for q in range(p + 1)]
        seq.sort()
        for _, kind, k in seq:
            if kind == "M":
                h, t = divmod(k, 2)
                Mm(f, h, t)
                if t == 1 and 2 * f + h + 8 < 200: side.append(lambda j=2 * f + h + 8: W(j))
                fill(24)
            else:
                e.need(("P", p, i))
                B = E(i, p) if p < 5 else q4("v", T5q(i))
                A = E(i, k) if k < 5 else B
                Pm(A, B, False, Tidx(k, p), PACC(i), i == 15)
                fill(8)
        flush_side()
    def T6q(g, t): return 96 + 16 * (g & 1) + 4 * t
    def T5g(t): return 128 + 4 * t
    W2R = 144; PG = 18
    for t in range(4): e(f"s_mov_b32 s{50+2*t}, {hex(0x000F000F << (4*t))}\ns_mov_b32 s{51+2*t}, {hex(0x000F000F << (4*t))}")
    def T6rd(g):
        def go():
            e(f"v_xad_u32 v9, v7, {g<<4}, v34")
            for t in range(4):
                e(f"s_mov_b64 exec, s[{50+2*t}:{51+2*t}]")
                e(f"ds_read_b128 {q4('v', T6q(g,t))}, v9 offset:{(4*g+t)*64}", tag=("T6", g, t))
            e("s_mov_b64 exec, -1")
        return go
    def T5rd(g):
        def go():
            e(f"v_xad_u32 v8, v7, {g<<4}, v11")
            for t in range(4): e(f"ds_read_b128 {q4('v', T5g(t))}, v8 offset:{(4*g+t)*64}", tag=("T5", g, t))
        return go
    red = []
    P = PACC
    for s in range(8): red += [f"v_permlane32_swap_b32 v{P(s)}, v{P(s+8)}"]
    for s in range(8): red += [f"v_add_f32 v{P(s)}, v{P(s)}, v{P(s+8)}"]
    for s in range(4): red += [f"v_permlane16_swap_b32 v{P(s)}, v{P(s+4)}"]
    for s in range(4): red += [f"v_add_f32 v{P(s)}, v{P(s)}, v{P(s+4)}"]
    for s in range(2): red += [f"v_add_f32_dpp v{P(s+4)}, v{P(s)}, v{P(s)} row_ror:8 row_mask:0xf bank_mask:0xf"]
    for s in range(2): red += [f"v_add_f32_dpp v{P(s+4)}, v{P(s+2)}, v{P(s+2)} row_ror:8 row_mask:0xf bank_mask:0xc"]
    red += [f"v_add_f32_dpp v{P(0)}, v{P(4)}, v{P(4)} row_half_mirror row_mask:0xf bank_mask:0xf"]
    red += [f"v_add_f32_dpp v{P(0)}, v{P(5)}, v{P(5)} row_half_mirror row_mask:0xf bank_mask:0xa"]
    for f in range(96, 100):
        if f < 99: side.extend(Ard(f + 1))
        if f == 97:
            flush_fm(1 << 30); extra.extend(red)
        if f == 98: side.append(T5rd(0))
        if f == 99:
            for r in range(16): side.append((f"v_mov_b32 v{96+r}, 0", None))
            side.append(T6rd(0))
            e(f"v_lshrrev_b32 v3, 5, v0\nv_lshlrev_b32 v3, 3, v3\ns_lshl_b32 s45, s40, 6\ns_add_u32 s45, s45, {W2_LDS}\nv_add_u32 v3, s45, v3")
            for i in range(4): side.append((f"ds_read_b64 v[{W2R+2*i}:{W2R+2*i+1}], v3 offset:{16*i}", ("w2r", i)))
        for k in range(4):
            h, t = divmod(k, 2)
            Mm(f, h, t)
            fill(24)
        flush_side()
    while extra: e(extra.popleft())
    for r in range(16): e(f"v_mov_b32 v{112+r}, 0")
    if cfg["stamps"]: stamp(e, cfg, 6)
    gl = []
    for r in range(16):
        raw = W2R + r // 2
        gl.append(("need", ("w2r", r // 4)))
        gl.append(f"v_lshlrev_b32 v14, 16, v{raw}" if r % 2 == 0 else f"v_and_b32 v14, 0xffff0000, v{raw}")
        x = [f"v{ACC + 16*t + r}" for t in range(2)]; T = ["v2", "v3"]; m = ["v12", "v13"]
        gl += [f"v_mul_f32 {T[t]}, {x[t]}, {x[t]}" for t in range(2)]
        gl += [f"v_fmaak_f32 {T[t]}, v33, {T[t]}, {hex(f2u(K1))}" for t in range(2)]
        gl += [f"v_mul_f32 {T[t]}, {T[t]}, {x[t]}" for t in range(2)]
        gl += [f"v_exp_f32 {T[t]}, {T[t]}" for t in range(2)]
        gl += [f"v_mul_f32 {x[t]}, {x[t]}, v14" for t in range(2)]
        gl += [f"v_add_f32 {T[t]}, 1.0, {T[t]}" for t in range(2)]
        gl += [f"v_rcp_f32 {T[t]}, {T[t]}" for t in range(2)]
        gl.append("s_nop 0") if False else None
        gl += [(f"v_mul_f32 {m[t]}, {x[t]}, {T[t]}" if r == 0 else f"v_fmac_f32 {m[t]}, {x[t]}, {T[t]}") for t in range(2)]
    gq = deque(gl)
    def fill6(budget):
        while budget > 0:
            if side: budget -= emit_side()
            elif fm_ready(): budget -= emit_fm()
            elif gq:
                it = gq.popleft()
                if isinstance(it, tuple): e.need(it[1]); continue
                e(it); budget -= 8 if it.startswith(("v_exp", "v_rcp")) else 4.6
            else: break
    for g in range(4):
        if g < 3: side.append(T6rd(g + 1))
        for qi, q in enumerate([0, 1, 2, 3, 4, 6, 5]):
            for t in range(4):
                s = 4 * g + t
                e.need(("T6", g, t))
                if q == 5: e.need(("T5", g, t))
                B = q4("v", T6q(g, t))
                A = E(s, q) if q < 5 else (B if q == 6 else q4("v", T5g(t)))
                Pm(A, B, t > 0, Tidx(q, 6), PG + g, False, init=(qi == 0), push=(t == 3))
                fill6(cfg["b6"])
            if q == 5 and g < 3: side.append(T5rd(g + 1))
    flush_side(); flush_fm(1 << 30)
    while gq:
        it = gq.popleft()
        if isinstance(it, tuple): e.need(it[1])
        else: e(it)
    e(f"v_permlane32_swap_b32 v{PG}, v{PG+2}\nv_permlane32_swap_b32 v{PG+1}, v{PG+3}\nv_permlane32_swap_b32 v12, v13")
    e(f"v_add_f32 v{PG}, v{PG}, v{PG+2}\nv_add_f32 v{PG+1}, v{PG+1}, v{PG+3}\nv_add_f32 v12, v12, v13")
    e(f"v_lshlrev_b32 v2, 2, v0\ns_lshl_b32 s45, s40, 8\ns_add_u32 s45, s45, {MP_LDS}\nv_add_u32 v3, s45, v2")
    e(f"v_permlane16_swap_b32 v{PG}, v{PG+1}")
    e("ds_write_b32 v3, v12")
    e(f"v_add_f32 v17, v17, v{PG}\nv_and_b32 v3, 60, v0\ns_lshl_b32 s45, s40, 6\ns_add_u32 s45, s45, {PP_LDS}\nv_add_f32 v17, v17, v{PG+1}\nv_add_u32 v3, s45, v3")
    e("v_add_f32_dpp v17, v17, v17 quad_perm:[1,0,3,2] row_mask:0xf bank_mask:0xf")
    e("v_add_f32_dpp v17, v17, v17 quad_perm:[2,3,0,1] row_mask:0xf bank_mask:0xf")
    e("ds_write_b32 v3, v17")
    e.drain(vm=False)
    e("s_barrier")
    e("s_cmp_lg_u32 s40, 0\ns_cbranch_scc1 L_end")
    e(f"v_add_u32 v3, {MP_LDS}, v2")
    for k in range(5): e(f"ds_read_b32 v{4+k}, v3 offset:{256*k}")
    e("s_lshl_b32 s45, s2, 7\nv_lshl_add_u32 v2, v0, 1, s45")
    e.drain(vm=False)
    e("v_add_f32 v4, v4, v5\nv_add_f32 v6, v6, v7\nv_add_f32 v8, v8, v35\nv_add_f32 v4, v4, v6\nv_add_f32 v4, v4, v8")
    e("v_cvt_pk_bf16_f32 v4, v4, v4")
    e("global_store_short v2, v4, s[18:19]")
    if cfg["stamps"]:
        stamp(e, cfg, 7)
        e("s_waitcnt lgkmcnt(0)\nv_cmp_eq_u32 vcc, 0, v0\ns_and_saveexec_b64 s[46:47], vcc")
        e(f"s_lshl_b32 s45, s2, 6\ns_add_u32 s45, s45, {STAMP_OFF}\ns_add_u32 s22, s22, s45\ns_addc_u32 s23, s23, 0\nv_mov_b32 v1, 0")
        for k in range(8):
            e(f"v_mov_b32 v2, s{80+2*k}\nv_mov_b32 v3, s{81+2*k}\nglobal_store_dwordx2 v1, v[2:3], s[22:23] offset:{8*k}\ns_nop 1")
    e.label("L_end")
    e("s_endpgm")
    e.label("L_codeend")
    return e

def gen_prep(cfg):
    e = Emit()
    e(f"s_cmp_ge_u32 s2, {NPROD}\ns_cbranch_scc1 L_pend")
    e("s_load_dwordx4 s[8:11], s[0:1], 16\ns_load_dwordx2 s[22:23], s[0:1], 72")
    e("v_lshrrev_b32 v9, 6, v0\nv_and_b32 v0, 63, v0\nv_readfirstlane_b32 s40, v9\ns_waitcnt lgkmcnt(0)")
    srd(e, 32, 22, WS_SIZE)
    producer(e, cfg, "L_pp")
    e.label("L_pend")
    e("s_endpgm")
    return e

def kernel(name, e):
    return f".globl {name}\n.p2align 8\n.type {name},@function\n{name}:\n" + e.text()

def build(**kw):
    cfg = dict(fused=False, stamps=False, codepf=True, b6=8, stamp_stages=[0, 2, 4],
               gpos=[-1, 0, 0, 1, 1, 2, 2, 3, 3, 4, 5, 6, 7, 8, 9, 10])
    cfg.update(kw)
    m = gen_main(cfg)
    sys.stderr.write(f"instructions {sum(m.counts.values())}, padded wait states {m.nops}, waits {m.counts.get('s_waitcnt')}\n")
    if cfg["fused"]:
        return file_text([f"; @launch grid=(256,1,1) block=(256,1,1) lds={LDS_SIZE}"], kernel(KN, m), [descriptor(KN, 512, 256)])
    p = gen_prep(cfg)
    return file_text([f"; @launch kernel=prep_kernel grid=({NPROD},1,1) block=(256,1,1) lds=0",
                      f"; @launch kernel={KN} grid=(256,1,1) block=(256,1,1) lds={LDS_SIZE}"],
                     kernel("prep_kernel", p) + kernel(KN, m), [descriptor("prep_kernel", 160, 160), descriptor(KN, 512, 256)])
if __name__ == "__main__":
    out = sys.argv[1]; kw = eval("dict(" + (sys.argv[2] if len(sys.argv) > 2 else "") + ")")
    open(out, "w").write(build(**kw))
```

```python
import sys, struct
from collections import deque
from asmlib import HEADER, KN, descriptor, file_text
from emit import Emit

SS = 1040; WREG = 16 * SS; BUF = 64 * SS; U_BASE = 2 * BUF; W2_LDS = U_BASE + 28 * 1024
MP_LDS = W2_LDS + 256; PP_LDS = MP_LDS + 1024; LDS_SIZE = PP_LDS + 256
WSTRIDE = 205824; WS_U = 4 * WSTRIDE; WS_SIZE = WS_U + 28 * 1024
NPROD_W = 50; NPROD = 57
STAMP_OFF = 128 << 20
def f2u(x): return struct.unpack("<I", struct.pack("<f", x))[0]
LOG2E = 1.4426950408889634
C1 = 2 * 0.7978845608028654
K1 = -C1 * LOG2E; K2 = -C1 * 0.044715 * LOG2E

def q4(p, b): return f"{p}[{b}:{b+3}]"
def E(s, q): return q4("a", (q * 16 + s) * 4) if q < 4 else q4("v", 192 + 4 * s)
def Dq(n): return 36 + 4 * (n % 3)
def Tq(q, s): return q4("v", 48 + 8 * (q - 5) + 4 * (s & 1))
def Uq(T): return 64 + 4 * (T % 8)
def Aq(f, h, t): return 96 + 16 * (f & 1) + 8 * h + 4 * t
def Wq(j): return 128 + 4 * (j % 8)
ACC = 160
def PACC(s): return 17 + s
def IREG(p, m):
    if p < 4: return 192 + 4 * m + p
    if p == 4: return 252 + m
    if p == 5: return 12 + m
    return (16, 33, 34, 35)[m]
def Tidx(q, p): return p * (p + 1) // 2 + q
def X(j): return (-(j >> 2)) & 3
vCOFF, vWOFF, vA0, vA1, vH, vP0, vP1, vU, vS = 1, 4, 5, 6, 7, 8, 9, 10, 11
sW, sW1K, sIDX, sWOFF, sWREG, sT, sSEL, sB2, sWOFF2 = 40, 41, 42, 43, 44, 45, 58, 59, 62

def srd(e, d, b, nbytes):
    e(f"s_mov_b32 s{d}, s{b}\ns_and_b32 s{d+1}, s{b+1}, 0xffff\ns_mov_b32 s{d+2}, {nbytes}\ns_mov_b32 s{d+3}, 0x00020000")

def prod_issue_w(e):
    srd(e, 36, 10, 819200)
    e("v_lshrrev_b32 v96, 5, v0\nv_lshlrev_b32 v96, 11, v96\nv_and_b32 v97, 31, v0\nv_lshl_add_u32 v96, v97, 2, v96")
    e(f"s_and_b32 s46, s{sW}, 1\ns_lshr_b32 s47, s{sW}, 1\ns_lshl_b32 s48, s2, 1\ns_add_u32 s47, s47, s48   ; field")
    e("s_lshl_b32 s48, s47, 13\ns_lshl_b32 s49, s46, 7\ns_add_u32 s48, s48, s49")
    for k in range(2):
        for x in range(8):
            e(f"buffer_load_dword v{128+8*k+x}, v96, s[36:39], s48 offen offset:{256*x}", tag=("raw", k))
        if k < 1: e("s_add_u32 s48, s48, 4096")
def prod_finish_w(e, cfg):
    e(f"s_mul_i32 s48, s46, {2*WSTRIDE}\ns_lshl_b32 s49, s47, 11\ns_add_u32 s48, s48, s49\ns_add_u32 s49, s48, {WSTRIDE}\nv_lshlrev_b32 v97, 4, v0")
    e("s_mov_b32 s50, 0x05040100\ns_mov_b32 s51, 0x07060302")
    for k in range(2):
        e.need(("raw", k))
        if cfg.get("pst") and k == 1: stamp(e, cfg, 3)
        for x in range(2):
            for y in range(4):
                e(f"v_perm_b32 v{100+8*k+4*x+y}, v{128+8*k+2*y+1}, v{128+8*k+2*y}, s{50+x}")
            e(f"buffer_store_dwordx4 {q4('v',100+8*k+4*x)}, v97, s[32:35], s{48+x} offen offset:{1024*k} sc0 sc1", tag="st")
def prod_issue_u(e, F):
    srd(e, 36, 8, 20000)
    e(f"s_sub_u32 s48, s2, {NPROD_W}\ns_lshl_b32 s48, s48, 2\ns_add_u32 s48, s48, s{sW}   ; tile T")
    e("s_mov_b32 s46, s48\ns_mov_b32 s47, 0")
    e.label("L_pl")
    e("s_cmp_le_u32 s46, s47\ns_cbranch_scc1 L_pd\ns_add_u32 s47, s47, 1\ns_sub_u32 s46, s46, s47\ns_branch L_pl")
    e.label("L_pd")
    lo = sum(F[k] << (8 * k) for k in range(4)); hi = sum(F[4 + k] << (8 * k) for k in range(4))
    e(f"s_mov_b32 s50, {hex(lo)}\ns_mov_b32 s51, {hex(hi)}")
    for reg, d in ((46, 52), (47, 54)):
        e(f"s_lshl_b32 s49, s{reg}, 3\ns_lshr_b64 s[56:57], s[50:51], s49\ns_and_b32 s{d}, s56, 0xff\ns_bfe_u32 s{d+1}, s56, 0x80008\ns_sub_u32 s{d+1}, s{d+1}, s{d}")
    e("v_and_b32 v94, 15, v0\nv_add_u32 v96, s54, v94         ; column j")
    e("v_lshrrev_b32 v95, 2, v0\nv_and_b32 v95, 12, v95\nv_add_u32 v97, s52, v95")
    e("v_mul_u32_u24 v98, 200, v97\nv_lshl_add_u32 v98, v96, 1, v98")
    e("v_mul_u32_u24 v99, 200, v96\nv_lshl_add_u32 v99, v97, 1, v99")
    e("s_cmp_eq_u32 s46, s47\ns_cselect_b32 s49, 0x100000, 0\nv_add_u32 v99, s49, v99   ; diagonal tile: no transposed part")
    for r in range(4): e(f"buffer_load_ushort v{128+r}, v98, s[36:39], 0 offen offset:{200*r}", tag="ua")
    e("buffer_load_dwordx2 v[132:133], v99, s[36:39], 0 offen", tag="ub")
def prod_finish_u(e, cfg):
    e(f"s_lshl_b32 s48, s48, 10\ns_add_u32 s48, s48, {WS_U}\nv_lshlrev_b32 v97, 4, v0")
    e("v_cmp_gt_u32 vcc, s55, v94\nv_mov_b32 v99, 64\nv_cndmask_b32 v95, v99, v95, vcc")
    e.need("ua", "ub")
    for r in range(4): e(f"v_lshlrev_b32 v{128+r}, 16, v{128+r}")
    e("v_lshlrev_b32 v134, 16, v132\nv_and_b32 v135, 0xffff0000, v132\nv_lshlrev_b32 v136, 16, v133\nv_and_b32 v137, 0xffff0000, v133")
    for r in range(4):
        e(f"v_add_f32 v{100+r}, v{128+r}, v{134+r}\nv_cmp_gt_u32 vcc, s53, v95\nv_add_u32 v95, 1, v95\nv_cndmask_b32 v{100+r}, 0, v{100+r}, vcc")
    e("buffer_store_dwordx4 v[100:103], v97, s[32:35], s48 offen sc0 sc1", tag="st")

def stamp(e, cfg, k):
    if cfg["stamps"]: e(f"{'s_memtime' if cfg['stamps']==2 else 's_memrealtime'} s[{80+2*k}:{81+2*k}]")

def released(p, o, bar, ops, k, F):
    fb = F[p - 1] - 1
    nxt = [i for i, x in enumerate(ops) if x["kind"] == "M" and x["f"] == fb and x["h"] == 0 and x["tt"] == 0][0]
    return k >= nxt - 1

def gen_main(cfg):
    e = Emit()
    N = cfg["sizes"]; assert sum(N) == 100 and len(N) == 7 and N[0] == N[1] == 16 and all(n % 2 == 0 and n <= 16 for n in N)
    F = [sum(N[:k]) for k in range(8)]
    sst = cfg.get("sst", [])
    e.label("L_start")
    e("s_cmp_ge_u32 s2, 256\ns_cbranch_scc1 L_end")
    e("s_load_dwordx16 s[4:19], s[0:1], 0\ns_load_dwordx4 s[20:23], s[0:1], 64")
    stamp(e, cfg, 0)
    e(f"v_lshrrev_b32 v9, 6, v0\nv_and_b32 v0, 63, v0\nv_readfirstlane_b32 s{sW}, v9\nv_lshlrev_b32 v{vWOFF}, 4, v0")
    if cfg["codepf"]:
        e("s_getpc_b64 s[46:47]")
        e.label("L_pc")
        e(f"s_sub_u32 s46, s46, L_pc-L_start\ns_subb_u32 s47, s47, 0")
        e(f"s_lshr_b32 s48, s2, 3\ns_and_b32 s48, s48, 31\ns_lshl_b32 s48, s48, 10\ns_lshl_b32 s49, s{sW}, 8\ns_add_u32 s48, s48, s49\ns_sub_u32 s48, s48, 1024")
        e(f"s_lshl_b32 s49, s{sW}, 9\nv_lshl_add_u32 v2, v0, 7, s49\nv_lshl_add_u32 v3, v0, 7, s48\nv_add_u32 v5, L_prod-L_start-512, v2")
        e("v_cmp_gt_u32 vcc, 4, v0\nv_cndmask_b32 v5, v5, v2, vcc\nv_cmp_gt_u32 vcc, 8, v0\nv_cndmask_b32 v5, v3, v5, vcc\nv_min_u32 v5, L_codeend-L_start-4, v5")
        e("s_mov_b64 exec, 0x3ff\nglobal_load_dword v116, v5, s[46:47]\ns_mov_b64 exec, -1")
    e(f"s_mul_i32 s{sWREG}, s{sW}, {WREG}\ns_lshl_b32 s{sIDX}, s2, 6\ns_lshl_b32 s{sT}, s{sW}, 4\ns_add_u32 s{sIDX}, s{sIDX}, s{sT}\ns_mul_i32 s{sIDX}, s{sIDX}, 400")
    e(f"s_add_u32 m0, s{sWREG}, {BUF}\ns_mov_b32 s26, 6553600\ns_mov_b32 s27, 0x00020000\ns_add_u32 s{sT}, s{sIDX}, 4096")
    nprod = 0 if cfg.get("noprod") else NPROD
    e(f"s_cmp_lt_u32 s2, {nprod}")
    e("s_waitcnt lgkmcnt(0)")
    if cfg.get("pst") or cfg.get("ist"): stamp(e, cfg, 6)
    e("s_cbranch_scc1 L_prod")
    def idx_dma(setup):
        if setup: e(f"s_add_u32 m0, s{sWREG}, {BUF}\ns_add_u32 s{sT}, s{sIDX}, 4096")
        e("s_mov_b32 s24, s4\ns_and_b32 s25, s5, 0xffff")
        for k in range(7):
            if k == 4: e("s_add_u32 m0, m0, 4096")
            if k == 6: e("s_mov_b64 exec, 0xffff")
            e(f"buffer_load_dwordx4 v{vWOFF}, s[24:27], s{sIDX if k < 4 else sT} offen offset:{1024*(k%4)} nt lds", tag="idx")
        e("s_mov_b64 exec, -1")
    idx_dma(False)
    if cfg.get("ist"): stamp(e, cfg, 3)
    e.label("L_join")
    srd(e, 28, 6, 6400000)
    e("v_and_b32 v2, 3, v0\nv_lshrrev_b32 v3, 4, v0")
    e(f"v_sub_u32 v{vCOFF}, 0, v3\nv_and_b32 v{vCOFF}, 3, v{vCOFF}\nv_xor_b32 v{vCOFF}, v{vCOFF}, v2\nv_lshlrev_b32 v{vCOFF}, 4, v{vCOFF}")
    e(f"v_mul_u32_u24 v5, 400, v2\nv_lshrrev_b32 v6, 2, v0\nv_lshl_add_u32 v5, v6, 2, v5\ns_add_u32 s{sT}, s{sWREG}, {BUF}\nv_add_u32 v5, s{sT}, v5")
    e(f"s_and_b32 s{sT}, s2, 1\ns_lshl_b32 s{sT}, s{sT}, 7\nv_mov_b32 v117, s{sT}")
    if cfg.get("ist"): stamp(e, cfg, 4)
    e(f"s_cmp_lt_u32 s2, {nprod}\ns_cbranch_scc1 L_idxok")
    e.need("idx")
    e.label("L_idxok")
    if cfg.get("ist"): stamp(e, cfg, 5)
    def Ird(p):
        for m in range(4): e(f"ds_read_b32 v{IREG(p,m)}, v5 offset:{1600*m+4*F[p]}", tag=("I", p, m))
    Ird(0); Ird(1); Ird(2)
    if not sst: stamp(e, cfg, 1)
    shifted = set()
    def shift_idx(p, m):
        if (p, m) in shifted: return
        shifted.add((p, m)); e.need(("I", p, m))
        assert N[p] == 16
        e(f"v_lshlrev_b32 v{IREG(p,m)}, 6, v{IREG(p,m)}")
    gcount = [0]
    def G(p, s):
        t = 2 + (gcount[0] & 1); gcount[0] += 1
        shift_idx(p, s >> 2); r = IREG(p, s >> 2); j = s & 3
        e(f"s_add_u32 m0, s{sWREG}, {(p&1)*BUF + s*SS}")
        e(f"v_add_u32_dpp v{t}, v{r}, v{vCOFF} quad_perm:[{j},{j},{j},{j}] row_mask:0xf bank_mask:0xf")
        e(f"buffer_load_dwordx4 v{t}, s[28:31], 0 offen lds", tag=("G", p, s))
    def Wtxt(j): return f"buffer_load_dwordx4 {q4('v', Wq(j))}, v{vWOFF}, s[32:35], s{(sWOFF, sWOFF2)[(j>>2)&1]} offen offset:{(j%4)*1024} sc1"
    def Winc(j): return f"s_add_u32 s{(sWOFF, sWOFF2)[(j>>2)&1]}, s{(sWOFF, sWOFF2)[(j>>2)&1]}, 8192"
    def W(j):
        e(Wtxt(j), tag=("W", j))
        if j % 4 == 3: e(Winc(j))
    def Udma():
        e(f"s_add_u32 s{sT}, s{sW1K}, {WS_U}")
        for k in range(7):
            e(f"s_add_u32 m0, s{sW1K}, {U_BASE + 4096*k}")
            e(f"buffer_load_dwordx4 v{vWOFF}, s[32:35], s{sT} offen sc1 lds", tag="Udma")
            if k < 6: e(f"s_add_u32 s{sT}, s{sT}, 4096")
    polls = cfg["polls"]
    pollw = 99 if cfg.get("noprod") else 0
    for s in range(16):
        G(0, s)
        if s == 3: e.need(("I", 2, 3)); Ird(3); Ird(4)
        if s == 7: e.need(("I", 4, 3)); Ird(5); Ird(6)
        if s + 1 in polls:
            e(f"s_cmp_lg_u32 s{sW}, {pollw}\ns_cbranch_scc1 L_np{s}")
            e.lines.append(f"  global_load_dword v{112+polls.index(s+1)}, v117, s[20:21] sc1"); e.pos += 1
            e.label(f"L_np{s}")
    srd(e, 32, 22, WS_SIZE)
    e(f"s_lshl_b32 s{sW1K}, s{sW}, 10\ns_mul_i32 s{sWOFF}, s{sW}, {WSTRIDE}\ns_add_u32 s{sWOFF2}, s{sWOFF}, 4096")
    e(f"v_lshrrev_b32 v2, 5, v0\nv_lshlrev_b32 v{vH}, 4, v2\ns_lshr_b32 s{sT}, s{sW}, 1\ns_lshl_b32 s{sT}, s{sT}, 7\nv_add_u32 v3, s{sT}, v{vH}")
    for i in range(4): e(f"global_load_dwordx4 {q4('v', 96+4*i)}, v3, s[12:13] offset:{32*i}", tag="b1")
    e("v_mov_b32 v2, 0\nglobal_load_ushort v118, v2, s[16:17]", tag="b2")
    e(f"s_mov_b32 m0, {W2_LDS}\nv_lshlrev_b32 v2, 2, v0\nglobal_load_lds_dword v2, s[14:15]", tag="w2")
    nextra = 6
    e("v_lshrrev_b32 v3, 4, v0")
    e(f"v_bfe_u32 v2, v0, 2, 2\nv_sub_u32 v6, 0, v2\nv_and_b32 v6, 3, v6\nv_xor_b32 v6, v6, v3\nv_and_b32 v{vP0}, 15, v0\nv_lshlrev_b32 v{vP0}, 6, v{vP0}\nv_lshl_add_u32 v{vP0}, v6, 4, v{vP0}")
    e(f"v_add_u32 v{vP0}, s{sWREG}, v{vP0}\nv_add_u32 v{vP1}, {BUF}, v{vP0}")
    e(f"v_and_b32 v{vS}, 31, v0\nv_mul_u32_u24 v{vS}, {SS}, v{vS}")
    e(f"v_add_u32 v{vU}, {U_BASE}, v{vWOFF}")
    for s in range(16): e(f"v_mov_b32 v{PACC(s)}, 0")
    for p in range(1, 7):
        if N[p] < 16:
            e(f"v_cmp_le_u32 vcc, {4*N[p]}, v0\nv_bfrev_b32 v2, 1\nv_cndmask_b32 v119, 0, v2, vcc")
        for m in range(4):
            shifted.add((p, m)); e.need(("I", p, m))
            e(f"v_lshlrev_b32 v{IREG(p,m)}, 6, v{IREG(p,m)}" if N[p] == 16 else f"v_lshl_or_b32 v{IREG(p,m)}, v{IREG(p,m)}, 6, v119")
    e(f"s_cmp_lg_u32 s{sW}, {pollw}\ns_cbranch_scc1 L_ready")
    for n, k in enumerate(polls):
        e(f"s_waitcnt vmcnt({16 - k + len(polls) - 1 - n + nextra})")
        e(f"v_cmp_eq_u32 vcc, {NPROD}, v{112+n}\ns_nop 0\ns_cbranch_vccnz L_ready")
    e(f"s_mov_b32 s{sT}, 0")
    e.label("L_spin")
    e.lines.append(f"  global_load_dword v112, v117, s[20:21] sc1\n  s_add_u32 s{sT}, s{sT}, 1\n  s_waitcnt vmcnt(0)\n  v_cmp_eq_u32 vcc, {NPROD}, v112\n  s_nop 0\n  s_cbranch_vccnz L_ready\n  s_sleep 8\n  s_cmp_lt_u32 s{sT}, 0x40000\n  s_cbranch_scc1 L_spin")
    e.label("L_ready")
    e("s_barrier")
    if not sst: stamp(e, cfg, 2)
    for j in range(4): W(j)
    Udma()
    for j in range(4, 8): W(j)
    g1pre = cfg["g1pre"]
    for s in range(g1pre): G(1, s)
    e.need("b1", "b2", "w2")
    e(f"s_and_b32 s{sT}, s{sW}, 1\ns_mul_i32 s{sT}, s{sT}, 0x02020000\ns_add_u32 s{sSEL}, s{sT}, 0x01000c0c\nv_lshlrev_b32 v118, 16, v118")
    for r in range(16):
        e(f"v_perm_b32 v{ACC+r}, v{96+r}, v{96+r}, s{sSEL}\nv_mov_b32 v{ACC+16+r}, v{ACC+r}")
    e(f"v_readfirstlane_b32 s{sB2}, v118")
    e.need(("G", 0, 15), "Udma")
    e("s_barrier")
    if cfg["stamps"] and -1 in cfg["stamp_stages"]: stamp(e, cfg, 3 + cfg["stamp_stages"].index(-1))

    stage_of = lambda f: max(p for p in range(7) if F[p] <= f)
    scal, mem, valu, fm, gq = deque(), deque(), deque(), deque(), deque()
    slot = [0]; tile_n = [0]; nextU = [0]; deadU = set(); gstate = [None]
    def Axad(f):
        j = f - F[stage_of(f)]
        return [f"v_xad_u32 v{vA0}, v{vH}, {X(j)<<4}, v{vS}", f"v_xad_u32 v{vA1}, v{vH}, {(X(j)^2)<<4}, v{vS}"] if j % 4 == 0 else []
    def Ard(f):
        j = f - F[stage_of(f)]
        return [(f"ds_read_b128 {q4('v', Aq(f,h,t))}, v{vA0+h} offset:{t*32*SS + j*64}", ("A", f, h, t)) for h in range(2) for t in range(2)]
    def frag(s, q): return E(s, q) if q < 5 else Tq(q, s)
    def Prd(p, s):
        ops = [(f"ds_read_b128 {frag(s,p)}, v{vP0 + (p&1)} offset:{s*SS}", ("P", p, s))]
        if p == 6: ops.insert(0, (f"ds_read_b128 {frag(s,5)}, v{vP1} offset:{s*SS}", None))
        return ops
    def pump_U():
        while nextU[0] < 28 and (nextU[0] < 8 or (nextU[0] - 8) in deadU):
            T = nextU[0]; mem.append((f"ds_read_b128 {q4('v', Uq(T))}, v{vU} offset:{T*1024}", ("U", T))); nextU[0] += 1
    def pump_G():
        if gstate[0] is None and gq:
            p, s = gq.popleft(); t = 2 + (gcount[0] & 1); gcount[0] += 1; j = s & 3
            st = dict(left=2, load=(f"buffer_load_dwordx4 v{t}, s[28:31], 0 offen lds", ("G", p, s)))
            gstate[0] = st
            def done():
                st["left"] -= 1
                if st["left"] == 0: st["ready_slot"] = slot[0] + 1
            scal.append((f"s_add_u32 m0, s{sWREG}, {(p&1)*BUF + s*SS}", done, slot[0]))
            valu.append((f"v_add_u32_dpp v{t}, v{IREG(p, s>>2)}, v{vCOFF} quad_perm:[{j},{j},{j},{j}] row_mask:0xf bank_mask:0xf", done))
    def emit_scal(upto=1 << 30):
        for it in scal:
            if it[2] <= upto:
                scal.remove(it); e(it[0])
                if it[1]: it[1]()
                return True
        return False
    def emit_valu():
        it = valu.popleft()
        if isinstance(it, str): e(it)
        else:
            e(it[0]); it[1]()
    def emit_mem():
        it = mem.popleft()
        if it[1] and ((cfg.get("noard") and it[1][0] == "A") or (cfg.get("noprd") and it[1][0] == "P")): e.tags[it[1]] = ("lg", e.lg_n); return 0
        if it[1] and cfg.get("now") and it[1][0] == "W": e.tags[it[1]] = ("vm", e.vm_n); return 0
        e(it[0], tag=it[1])
        return 0.8 if it[0].startswith("ds_") else 0.3
    def emit_gload():
        st = gstate[0]
        if st is not None and st["left"] == 0 and st["ready_slot"] <= slot[0]:
            e(st["load"][0], tag=st["load"][1]); gstate[0] = None; pump_G(); return 0.75
        return 0
    def force_G(tag):
        while tag not in e.tags:
            assert gstate[0] is not None, tag
            st = gstate[0]
            while st["left"]:
                if scal: emit_scal()
                if st["left"] and valu: emit_valu()
            st["ready_slot"] = slot[0]; emit_gload()
    def ensure(tags):
        for t in tags:
            if t[0] == "G": force_G(t)
            while t not in e.tags: emit_mem()
    def fm_ready(): return fm and (e.pos - fm[0]["pos"] - 1) >= 8
    def emit_fm():
        t = fm[0]; k = t["k"]
        if k == 0: ensure([("U", t["T"])]); e.need(("U", t["T"]))
        if not cfg.get("nofma"): e(f"v_fmac_f32 v{t['acc']}, v{t['D']+k}, v{Uq(t['T'])+k}")
        t["k"] += 1
        if t["k"] == 4:
            fm.popleft()
            if t["last"]: deadU.add(t["T"]); pump_U()
    def flush_fm(upto):
        while fm and fm[0]["n"] <= upto:
            if not fm_ready() and valu: emit_valu()
            else: emit_fm()
    extra = deque()
    red = []
    P = PACC
    for s in range(8): red += [f"v_permlane32_swap_b32 v{P(s)}, v{P(s+8)}"]
    for s in range(8): red += [f"v_add_f32 v{P(s)}, v{P(s)}, v{P(s+8)}"]
    for s in range(4): red += [f"v_permlane16_swap_b32 v{P(s)}, v{P(s+4)}"]
    for s in range(4): red += [f"v_add_f32 v{P(s)}, v{P(s)}, v{P(s+4)}"]
    for s in range(2): red += [f"v_add_f32_dpp v{P(s+4)}, v{P(s)}, v{P(s)} row_ror:8 row_mask:0xf bank_mask:0xf"]
    for s in range(2): red += [f"v_add_f32_dpp v{P(s+4)}, v{P(s+2)}, v{P(s+2)} row_ror:8 row_mask:0xf bank_mask:0xc"]
    red += [f"v_add_f32_dpp v{P(0)}, v{P(4)}, v{P(4)} row_half_mirror row_mask:0xf bank_mask:0xf"]
    red += [f"v_and_b32 v3, 60, v0", f"v_add_f32_dpp v{P(0)}, v{P(5)}, v{P(5)} row_half_mirror row_mask:0xf bank_mask:0xa"]
    red += [f"s_lshl_b32 s{sT}, s{sW}, 6", f"s_add_u32 s{sT}, s{sT}, {PP_LDS}"]
    red += [f"v_add_f32_dpp v17, v17, v17 quad_perm:[1,0,3,2] row_mask:0xf bank_mask:0xf", f"v_add_u32 v3, s{sT}, v3"]
    red += [f"s_lshr_b32 s{sT}, s{sW}, 1", f"v_add_f32_dpp v17, v17, v17 quad_perm:[2,3,0,1] row_mask:0xf bank_mask:0xf"]
    W2R = 64
    red += [f"s_lshl_b32 s{sT}, s{sT}, 7", f"s_add_u32 s{sT}, s{sT}, {W2_LDS}", f"v_add_u32 v2, s{sT}, v{vH}"]
    red += ["ds_write_b32 v3, v17"]
    red += [f"ds_read_b128 {q4('v', W2R+4*i)}, v2 offset:{32*i}" for i in range(4)]
    red += [f"s_mov_b32 s60, {hex(f2u(K2))}", f"s_mov_b32 s61, {hex(f2u(K2))}", f"v_mov_b32 v48, {hex(f2u(K1))}", f"v_mov_b32 v49, {hex(f2u(K1))}", "v_mov_b32 v50, 1.0", "v_mov_b32 v51, 1.0"]

    LAG = cfg["plag"]; GEND = cfg["gend"]
    units = [(cfg["p0off"] + s * (N[0] - 1 - cfg["p0off"]) / 16.0, 0, s) for s in range(16)]
    for p in range(1, 7):
        units += [(F[p - 1] + LAG + s * N[p - 1] / 16.0, p, s) for s in range(16)]
    units.sort()
    ops = []
    for f in range(100):
        for k in range(4): ops.append(dict(t=f + k / 4.0 - 1e-4, kind="M", f=f, h=k >> 1, tt=k & 1))
    for u, (t0, p, s) in enumerate(units):
        t1 = units[u + 1][0] if u + 1 < len(units) else t0 + (p + 1) * 0.16
        for k in range(p + 1): ops.append(dict(t=t0 + (k + 0.5) * (t1 - t0) / (p + 1), kind="P", u=u, k=k, p=p, s=s))
    ops.sort(key=lambda o: o["t"])
    gt = []
    for p in range(1, 7):
        for s in range(16):
            if p == 1 and s < g1pre: continue
            t = F[p - 1] - 1 + s * (N[p - 1] - GEND) / 15.0
            if p == 1: t = (s - g1pre) * (N[0] - 1 - GEND) / (15.0 - g1pre)
            gt.append((t, p, s))
    gt = deque(sorted(gt))
    for o in ops:
        if o["kind"] == "M":
            f, h = o["f"], o["h"]
            o["needs"] = [("A", f, h, 1), ("W", 2 * f + h)] if o["tt"] == 0 else []
        else: o["needs"] = [("P", o["p"], o["s"])] if o["k"] == 0 else []
    pump_U()
    for x in Axad(0): e(x)
    mem.extend(Ard(0)); mem.extend(Prd(units[0][1], units[0][2]))
    while mem: emit_mem()
    red_queued = False
    for k, o in enumerate(ops):
        slot[0] = k
        ensure(o["needs"]); e.need(*o["needs"])
        gate = []
        if o["kind"] == "M":
            f, h, tt = o["f"], o["h"], o["tt"]
            if h == 0 and tt == 0 and f in sst: stamp(e, cfg, 1 + sst.index(f))
            c = f"v[{ACC+16*tt}:{ACC+16*tt+15}]"
            if cfg.get("m16"):
                for z in range(2):
                    cz = q4("v", ACC + 16 * tt + 8 * h + 4 * z)
                    e(f"v_mfma_f32_16x16x32_bf16 {cz}, {q4('v', Wq(2*f+z))}, {q4('v', Aq(f,h,tt))}, {cz}")
            elif not cfg.get("nom"): e(f"v_mfma_f32_32x32x16_bf16 {c}, {q4('v', Wq(2*f+h))}, {q4('v', Aq(f,h,tt))}, {c}")
            j = 2 * f + h + 8
            if tt == 1 and j < 200:
                if j % 4 == 0:
                    for it in [x for x in scal if x[0] == Winc(j)]: scal.remove(it); e(it[0])
                mem.appendleft((Wtxt(j), ("W", j)))
                if j % 4 == 3: scal.append((Winc(j), None, k + 1))
            if h == 0 and tt == 0 and f < 99:
                while any(isinstance(x, str) for x in valu): emit_valu()
                mem.extend(Ard(f + 1))
            if h == 1 and tt == 0 and f < 98:
                while any(m[1] and m[1][0] == "A" for m in mem): emit_mem()
                if f + 2 in F: valu.append(f"{'v_add_u32' if stage_of(f) % 2 == 0 else 'v_subrev_u32'} v{vS}, {BUF}, v{vS}")
                valu.extend(Axad(f + 2))
            budget = 6
        else:
            n = tile_n[0]; flush_fm(n - 3)
            q, s = o["p"], o["s"]
            if not cfg.get("nop"): e(f"v_mfma_f32_16x16x32_bf16 {q4('v', Dq(n))}, {frag(s, o['k'])}, {frag(s, q)}, 0")
            fm.append(dict(n=n, pos=e.pos - 1, k=0, D=Dq(n), T=Tidx(o["k"], q), acc=PACC(s), last=(s == 15))); tile_n[0] += 1
            if o["k"] == 0 and o["u"] + 1 < len(units):
                _, q2, s2 = units[o["u"] + 1]
                gate = [("G", q2, s2)]; ensure(gate); mem.extend(Prd(q2, s2))
            budget = 2
        nxt = ops[k + 1] if k + 1 < len(ops) else None
        before = len(e.lines)
        bar = nxt and nxt["kind"] == "M" and nxt["h"] == 0 and nxt["tt"] == 0 and (nxt["f"] + 1) in F[1:7]
        if bar:
            pb = F.index(nxt["f"] + 1) - 1
            held = [m for m in mem if m[1] and m[1][0] == "P" and gate]
            for m in held: mem.remove(m)
            if gate: e.need(*gate)
            fb = nxt["f"]
            want = [("A", fb, h, t) for h in range(2) for t in range(2)] + [("G", pb + 1, 15)] + nxt["needs"]
            if pb < 5: want += [("P", pb, s) for s in range(16)]
            ensure(want); e.need(*want)
            e("s_barrier")
            mem.extend(held)
            if cfg["stamps"] and pb in cfg["stamp_stages"]: stamp(e, cfg, 3 + cfg["stamp_stages"].index(pb))
        else:
            want = list(gate)
            if nxt and all(t in e.tags for t in nxt["needs"]): want += nxt["needs"]
            e.need(*want)
        while gt and gt[0][0] <= o["t"] + (1.0 if bar and False else 0) and not (gt[0][2] == 0 and gt[0][1] > 1 and not released(gt[0][1], o, bar, ops, k, F)):
            _, gp, gs = gt.popleft(); gq.append((gp, gs))
        pump_G()
        if len(e.lines) == before: emit_scal(k)
        budget -= emit_gload()
        nm = 0
        while mem and nm < (4 if o["kind"] == "M" else 2): budget -= emit_mem(); nm += 1
        if not red_queued and tile_n[0] == 448 and not fm:
            red_queued = True; extra.extend(red)
        while budget > 0.5:
            if valu: emit_valu()
            elif fm_ready(): emit_fm()
            elif emit_scal(k - 1): pass
            elif extra: e(extra.popleft())
            elif fm and tile_n[0] == 448: emit_fm()
            else: break
            budget -= 1
        if nxt and nxt["kind"] == "P": flush_fm(tile_n[0] - 3)
    assert not gt and not gq and gstate[0] is None and not scal
    while mem: emit_mem()
    while valu: emit_valu()
    flush_fm(1 << 30)
    if not red_queued: extra.extend(red)
    while extra: e(extra.popleft())
    if not cfg.get("pst") and not cfg.get("ist"): stamp(e, cfg, 6)
    e.drain(vm=False)
    TA = [96, 98, 100, 102]; WF = [104, 106]; M = [12, 14]
    for r in range(0, 16, 2):
        wf = WF[(r >> 1) & 1]
        e(f"v_perm_b32 v{wf}, v{W2R+r}, v{W2R+r}, s{sSEL}\nv_perm_b32 v{wf+1}, v{W2R+r+1}, v{W2R+r+1}, s{sSEL}")
        x = [f"v[{ACC+16*t+r}:{ACC+16*t+r+1}]" for t in range(2)]
        tb = [TA[2 * ((r >> 1) & 1) + t] for t in range(2)]
        T = [f"v[{b}:{b+1}]" for b in tb]
        for t in range(2): e(f"v_pk_mul_f32 {T[t]}, {x[t]}, {x[t]}")
        for t in range(2): e(f"v_pk_fma_f32 {T[t]}, {T[t]}, s[60:61], v[48:49]")
        for t in range(2): e(f"v_pk_mul_f32 {T[t]}, {T[t]}, {x[t]}")
        for t in range(2): e(f"v_exp_f32 v{tb[t]}, v{tb[t]}\nv_exp_f32 v{tb[t]+1}, v{tb[t]+1}")
        for t in range(2): e(f"v_pk_mul_f32 {x[t]}, {x[t]}, v[{wf}:{wf+1}]")
        for t in range(2): e(f"v_pk_add_f32 {T[t]}, {T[t]}, v[50:51]")
        for t in range(2): e(f"v_rcp_f32 v{tb[t]}, v{tb[t]}\nv_rcp_f32 v{tb[t]+1}, v{tb[t]+1}")
        for t in (0, 1):
            m = f"v[{M[t]}:{M[t]+1}]"
            e(f"v_pk_mul_f32 {m}, {x[t]}, {T[t]}" if r == 0 else f"v_pk_fma_f32 {m}, {x[t]}, {T[t]}, {m}")
    e(f"v_lshlrev_b32 v2, 2, v0\ns_lshl_b32 s{sT}, s{sW}, 8\ns_add_u32 s{sT}, s{sT}, {MP_LDS}\nv_add_f32 v12, v12, v13\nv_add_f32 v14, v14, v15\nv_add_u32 v3, s{sT}, v2")
    e("v_permlane32_swap_b32 v12, v14\nv_add_f32 v12, v12, v14")
    e("ds_write_b32 v3, v12")
    e.drain(vm=False)
    e("s_barrier")
    e(f"s_cmp_lg_u32 s{sW}, 0\ns_cbranch_scc1 L_end")
    e(f"v_add_u32 v3, {MP_LDS}, v2")
    for k in range(5): e(f"ds_read_b32 v{4+k}, v3 offset:{256*k}")
    e(f"s_lshl_b32 s{sT}, s2, 7\nv_lshl_add_u32 v2, v0, 1, s{sT}")
    e.drain(vm=False)
    e(f"v_add_f32 v4, v4, v5\nv_add_f32 v6, v6, v7\nv_add_f32 v8, s{sB2}, v8\nv_add_f32 v4, v4, v6\nv_add_f32 v4, v4, v8")
    e("v_cvt_pk_bf16_f32 v4, v4, v4")
    e("global_store_short v2, v4, s[18:19]")
    if cfg["stamps"]:
        stamp(e, cfg, 7)
        e("s_waitcnt lgkmcnt(0)\nv_cmp_eq_u32 vcc, 0, v0\ns_and_saveexec_b64 s[46:47], vcc")
        e(f"s_lshl_b32 s{sT}, s2, 6\ns_add_u32 s{sT}, s{sT}, {STAMP_OFF}\ns_add_u32 s22, s22, s{sT}\ns_addc_u32 s23, s23, 0\nv_mov_b32 v1, 0")
        for k in range(8):
            e(f"v_mov_b32 v2, s{80+2*k}\nv_mov_b32 v3, s{81+2*k}\nglobal_store_dwordx2 v1, v[2:3], s[22:23] offset:{8*k}\ns_nop 1")
    e.label("L_end")
    e("s_endpgm")
    e.label("L_prod")
    e.vm_n = e.vm_done = e.lg_n = e.lg_done = 0
    e("s_nop 4")
    srd(e, 32, 22, WS_SIZE)
    e(f"s_cmp_ge_u32 s2, {NPROD_W}\ns_cbranch_scc1 L_produ")
    prod_issue_w(e); idx_dma(True); prod_finish_w(e, cfg); e("s_branch L_prodst")
    e.label("L_produ")
    prod_issue_u(e, F); idx_dma(True); prod_finish_u(e, cfg)
    e.label("L_prodst")
    if cfg.get("pst"): stamp(e, cfg, 4)
    e("s_waitcnt vmcnt(0)")
    if cfg.get("pst"): stamp(e, cfg, 5)
    e("s_barrier")
    e(f"s_cmp_lg_u32 s{sW}, 0\ns_cbranch_scc1 L_join")
    e("v_lshlrev_b32 v96, 7, v0\nv_mov_b32 v97, 1\ns_mov_b64 exec, 3")
    e("global_atomic_add v96, v97, s[20:21] sc1\ns_mov_b64 exec, -1")
    e("s_branch L_join")
    e.label("L_codeend")
    return e

def kernel(name, e):
    return f".globl {name}\n.p2align 8\n.type {name},@function\n{name}:\n" + e.text()

def build(**kw):
    cfg = dict(stamps=False, codepf=True, stamp_stages=[-1, 1, 4], sizes=[16, 16, 16, 16, 14, 12, 10],
               polls=[12], g1pre=4, plag=4, p0off=2, gend=5, mergew=True)
    cfg.update(kw)
    m = gen_main(cfg)
    sys.stderr.write(f"instructions {sum(m.counts.values())}, padded wait states {m.nops}, waits {m.counts.get('s_waitcnt')}\n")
    return file_text([f"; @launch grid=(256,1,1) block=(256,1,1) lds={LDS_SIZE}"], kernel(KN, m), [descriptor(KN, 512, 256)])
if __name__ == "__main__":
    out = sys.argv[1]; kw = eval("dict(" + (sys.argv[2] if len(sys.argv) > 2 else "") + ")")
    open(out, "w").write(build(**kw))
```

```python
import re
REG = re.compile(r"^(-?)(abs\()?([vas])(\d+)\)?$|^([vas])\[(\d+):(\d+)\]$")
def regs_of(op):
    op = op.strip()
    if op in ("vcc",): return ["vcc"]
    if op in ("vcc_lo", "vcc_hi"): return ["vcc"]
    if op in ("exec", "exec_lo", "exec_hi"): return ["exec"]
    if op == "m0": return ["m0"]
    m = REG.match(op)
    if not m: return []
    if m.group(3): return [m.group(3) + m.group(4)]
    return [m.group(5) + str(i) for i in range(int(m.group(6)), int(m.group(7)) + 1)]
TRANS = ("v_exp_f32", "v_log_f32", "v_rcp_f32", "v_rsq_f32", "v_sqrt_f32", "v_sin_f32", "v_cos_f32")
class Emit:
    def __init__(self):
        self.lines = []; self.pos = 0
        self.vm_n = 0; self.vm_done = 0; self.lg_n = 0; self.lg_done = 0
        self.tags = {}
        self.mfma_w = {}
        self.mfma_c = {}
        self.valu_w = {}
        self.trans_w = {}
        self.valu_sw = {}
        self.salu_m0 = -99
        self.store_data = {}
        self.nops = 0
        self.protected = {}
        self.counts = {}
    def raw(self, s): self.lines.append(s)
    def label(self, s): self.lines.append(s + ":")
    def comment(self, s): self.lines.append("  ; " + s)
    def nop(self, n):
        while n > 0:
            k = min(n, 16); self.lines.append(f"  s_nop {k-1}"); self.pos += k; n -= k; self.nops += k
    def parse(self, s):
        s = s.split(";")[0].strip()
        mn, _, rest = s.partition(" ")
        ops = [o.strip() for o in re.split(r",(?![^\[]*\])", rest)] if rest else []
        if ops:
            last = ops[-1].split()
            ops[-1] = last[0]; mods = last[1:]
        else: mods = []
        return mn, ops, mods
    def __call__(self, text, tag=None):
        for s in text.split("\n"):
            s = s.strip()
            if not s: continue
            if s.endswith(":"): self.label(s[:-1]); continue
            self.ins(s, tag)
    def protect(self, *regs):
        for r in regs: self.protected[r] = True
    def release(self, *regs):
        for r in regs: self.protected.pop(r, None)
    def uncounted(self, text):
        n = self.vm_n
        self(text)
        self.vm_n = n
    def ins(self, s, tag=None):
        mn, ops, mods = self.parse(s)
        R = [regs_of(o) for o in ops]
        rd, wr = [], []
        kind = "other"; need = 0
        def dist_req(p, req):
            return max(0, req - (self.pos - p - 1))
        ismfma = mn.startswith("v_mfma")
        isvalu = mn.startswith("v_") and not ismfma
        isds = mn.startswith("ds_"); isvm = mn.startswith(("buffer_", "global_"))
        islds_dma = isvm and "lds" in mods or mn.startswith("global_load_lds")
        if ismfma:
            wr = R[0]; rdAB = R[1] + R[2]; rdC = R[3]; rd = rdAB + rdC
            passes = 8 if "32x32x16" in mn else 4 if "16x16x32" in mn else None
            assert passes
            for r in rdAB:
                if r in self.mfma_w: p, ps, _ = self.mfma_w[r]; need = max(need, dist_req(p, {4: 8, 8: 12}[ps]))
            for r in rdC:
                if r in self.mfma_w:
                    p, ps, d = self.mfma_w[r]
                    if d == tuple(rdC) and ps == passes: pass
                    else: need = max(need, dist_req(p, {4: 6, 8: 10}[ps]))
            for r in wr:
                if r in self.mfma_w and r not in rdC:
                    p, ps, d = self.mfma_w[r]
                    if not (d == tuple(wr) and ps == passes): need = max(need, dist_req(p, {4: 8, 8: 12}[ps]))
            for r in rd:
                if r in self.valu_w: need = max(need, dist_req(self.valu_w[r], 2))
            if "exec" in self.valu_sw: need = max(need, dist_req(self.valu_sw["exec"], 4))
        elif isvalu:
            if mn.startswith("v_cmpx"): wr = R[0] + ["exec"]; rd = sum(R[1:], [])
            elif "swap" in mn: wr = R[0] + R[1]; rd = wr
            elif mn.startswith(("v_fmac", "v_dot2c")): wr = R[0]; rd = sum(R, [])
            elif mn.startswith(("v_add_co", "v_addc_co", "v_sub_co")): wr = R[0] + R[1]; rd = sum(R[2:], [])
            else: wr = R[0]; rd = sum(R[1:], [])
            isdpp = "_dpp" in mn
            if isdpp and any(m.startswith("bank_mask") and m != "bank_mask:0xf" for m in mods): rd = rd + wr
            if mn.startswith("v_cndmask") and len(ops) == 3: rd = rd + ["vcc"]
            for r in rd + wr:
                if r in self.mfma_w: p, ps, _ = self.mfma_w[r]; need = max(need, dist_req(p, {4: 8, 8: 12}[ps]))
            for r in wr:
                if r in self.mfma_c: p, ps = self.mfma_c[r]; need = max(need, dist_req(p, {4: 3, 8: 7}[ps]))
                if r in self.store_data: need = max(need, dist_req(self.store_data[r], 2))
            vsrc = [r for r in rd if r[0] in "va" and r != "vcc"]
            if isdpp or "permlane" in mn:
                for r in vsrc:
                    if r in self.valu_w: need = max(need, dist_req(self.valu_w[r], 2))
                if isdpp and "exec" in self.valu_sw: need = max(need, dist_req(self.valu_sw["exec"], 5))
            if mn.startswith(("v_readlane", "v_readfirstlane")):
                for r in vsrc:
                    if r in self.valu_w: need = max(need, dist_req(self.valu_w[r], 1))
                if "exec" in self.valu_sw: need = max(need, dist_req(self.valu_sw["exec"], 4))
            if mn not in TRANS:
                for r in vsrc:
                    if r in self.trans_w: need = max(need, dist_req(self.trans_w[r], 1))
            for r in rd:
                if (r[0] == "s" or r == "vcc") and r in self.valu_sw: need = max(need, dist_req(self.valu_sw[r], 2))
        elif isds:
            if mn.startswith("ds_read"): wr = R[0]; rd = sum(R[1:], [])
            else: rd = sum(R, [])
        elif isvm:
            if islds_dma: rd = sum(R, []); need = max(need, dist_req(self.salu_m0, 1))
            elif "_load" in mn: wr = R[0]; rd = sum(R[1:], [])
            elif "atomic" in mn: rd = sum(R, [])
            else: rd = sum(R, [])
            for r in rd:
                if r[0] == "s" and r in self.valu_sw: need = max(need, dist_req(self.valu_sw[r], 5))
        if isds or isvm:
            for r in rd + wr:
                if r in self.mfma_w: p, ps, _ = self.mfma_w[r]; need = max(need, dist_req(p, {4: 8, 8: 12}[ps]))
            for r in wr:
                if r in self.mfma_c: p, ps = self.mfma_c[r]; need = max(need, dist_req(p, {4: 3, 8: 7}[ps]))
                if r in self.store_data: need = max(need, dist_req(self.store_data[r], 1))
        if mn.startswith("s_") and R and mn.split("_")[1] not in ("cmp", "cbranch", "branch", "waitcnt", "nop", "barrier", "endpgm", "sleep", "setprio", "bitcmp1", "bitcmp0"): wr = R[0]
        for r in wr:
            assert r not in self.protected, f"write to protected register {r}: {s}"
        if need: self.nop(need)
        self.lines.append("  " + s)
        p = self.pos
        if mn == "s_nop": self.pos += int(ops[0]) + 1
        else: self.pos += 1
        self.counts[mn] = self.counts.get(mn, 0) + 1
        if ismfma:
            for r in wr: self.mfma_w[r] = (p, passes, tuple(wr)); self.valu_w.pop(r, None)
            for r in rdC: self.mfma_c[r] = (p, passes)
        else:
            for r in wr: self.mfma_w.pop(r, None)
        if isvalu:
            for r in wr:
                if r[0] in "va" and r != "vcc":
                    self.valu_w[r] = p
                    if mn in TRANS: self.trans_w[r] = p
                    else: self.trans_w.pop(r, None)
                else: self.valu_sw[r] = p
        if mn.startswith("s_") and ops and "m0" in R[0] and not mn.startswith("s_cmp"): self.salu_m0 = p
        if isvm and "_store" in mn and ("x4" in mn or "x3" in mn):
            data = R[0] if mn.startswith("buffer") else R[1]
            for r in data: self.store_data[r] = p
        if isvm:
            self.vm_n += 1
            if tag is not None: self.tags[tag] = ("vm", self.vm_n)
        if isds:
            self.lg_n += 1
            if tag is not None: self.tags[tag] = ("lg", self.lg_n)
    def need(self, *tags):
        vm = lg = None
        for t in tags:
            k, n = self.tags[t]
            if k == "vm" and n > self.vm_done: vm = max(vm or 0, n)
            if k == "lg" and n > self.lg_done: lg = max(lg or 0, n)
        parts = []
        if vm is not None:
            c = min(63, self.vm_n - vm); parts.append(f"vmcnt({c})"); self.vm_done = self.vm_n - c
        if lg is not None:
            c = min(15, self.lg_n - lg); parts.append(f"lgkmcnt({c})"); self.lg_done = self.lg_n - c
        if parts: self.ins("s_waitcnt " + " ".join(parts))
    def drain(self, vm=True, lg=True):
        parts = []
        if vm: parts.append("vmcnt(0)"); self.vm_done = self.vm_n
        if lg: parts.append("lgkmcnt(0)"); self.lg_done = self.lg_n
        self.ins("s_waitcnt " + " ".join(parts))
    def text(self): return "\n".join(self.lines) + "\n"
```

```python
import sys, struct
from collections import deque
from asmlib import HEADER, KN, descriptor, file_text
from emit import Emit

SS = 1040; WREG = 16 * SS; BUF = 64 * SS; U_BASE = 2 * BUF; W2_LDS = U_BASE + 28 * 1024
MP_LDS = W2_LDS + 256; PP_LDS = MP_LDS + 1024; LDS_SIZE = PP_LDS + 256
WSTRIDE = 205824; WS_U = 4 * WSTRIDE; WS_TAG = WS_U + 28 * 1024; WS_SIZE = WS_TAG + 64 * 128
NPROD_W = 50; NPROD = 57
STAMP_OFF = 128 << 20
def f2u(x): return struct.unpack("<I", struct.pack("<f", x))[0]
LOG2E = 1.4426950408889634
C1 = 2 * 0.7978845608028654
K1 = -C1 * LOG2E; K2 = -C1 * 0.044715 * LOG2E

def q4(p, b): return f"{p}[{b}:{b+3}]"
def E(s, q): return q4("a", (q * 16 + s) * 4) if q < 4 else q4("v", 192 + 4 * s)
def Dq(n): return 36 + 4 * (n % 3)
def Tq(q, s): return q4("v", 48 + 8 * (q - 5) + 4 * (s & 1))
def Uq(T): return 64 + 4 * (T % 8)
def Aq(f, h, t): return 96 + 16 * (f & 1) + 8 * h + 4 * t
def Wq(j): return 128 + 4 * (j % 8)
ACC = 160
def PACC(s): return 17 + s
def IREG(p, m):
    if p < 4: return 192 + 4 * m + p
    if p == 4: return 252 + m
    if p == 5: return 12 + m
    return (16, 33, 34, 35)[m]
def Tidx(q, p): return p * (p + 1) // 2 + q
def X(j): return (-(j >> 2)) & 3
vCOFF, vWOFF, vA0, vA1, vH, vP0, vP1, vU, vS = 1, 4, 5, 6, 7, 8, 9, 10, 11
vPOLL, vPADR, vB2, vDEAD, vPF = 112, 120, 121, 122, 123
sW, sW1K, sIDX, sWOFF, sWREG, sT, sSEL, sB2, sWOFF2, sPG, sNOW, sBASE = 40, 41, 42, 43, 44, 45, 58, 59, 62, 63, 66, 67

def srd(e, d, b, nbytes):
    e(f"s_mov_b32 s{d}, s{b}\ns_and_b32 s{d+1}, s{b+1}, 0xffff\ns_mov_b32 s{d+2}, {nbytes}\ns_mov_b32 s{d+3}, 0x00020000")

def prod_issue_w(e):
    srd(e, 36, 10, 819200)
    e("v_lshrrev_b32 v96, 5, v0\nv_lshlrev_b32 v96, 11, v96\nv_and_b32 v97, 31, v0\nv_lshl_add_u32 v96, v97, 2, v96")
    e("s_lshl_b32 s48, s47, 13\ns_lshl_b32 s49, s46, 7\ns_add_u32 s48, s48, s49")
    for k in range(2):
        for x in range(8):
            e(f"buffer_load_dword v{128+8*k+x}, v96, s[36:39], s48 offen offset:{256*x}", tag=("raw", k))
        if k < 1: e("s_add_u32 s48, s48, 4096")
def prod_finish_w(e):
    e(f"s_mul_i32 s48, s46, {2*WSTRIDE}\ns_lshl_b32 s49, s47, 11\ns_add_u32 s48, s48, s49\ns_add_u32 s49, s48, {WSTRIDE}\nv_lshlrev_b32 v97, 4, v0")
    e("s_mov_b32 s50, 0x05040100\ns_mov_b32 s51, 0x07060302")
    for k in range(2):
        e.need(("raw", k))
        for x in range(2):
            for y in range(4):
                e(f"v_perm_b32 v{100+8*k+4*x+y}, v{128+8*k+2*y+1}, v{128+8*k+2*y}, s{50+x}")
            e(f"buffer_store_dwordx4 {q4('v',100+8*k+4*x)}, v97, s[32:35], s{48+x} offen offset:{1024*k} sc0 sc1", tag="st")
def prod_issue_u(e, F):
    srd(e, 36, 8, 20000)
    e("s_mov_b32 s46, s48\ns_mov_b32 s47, 0")
    for k in range(6):
        e("s_cmp_gt_u32 s46, s47\ns_cselect_b32 s49, 1, 0\ns_add_u32 s47, s47, s49\ns_mul_i32 s49, s49, s47\ns_sub_u32 s46, s46, s49")
    lo = sum(F[k] << (8 * k) for k in range(4)); hi = sum(F[4 + k] << (8 * k) for k in range(4))
    e(f"s_mov_b32 s50, {hex(lo)}\ns_mov_b32 s51, {hex(hi)}")
    for reg, d in ((46, 52), (47, 54)):
        e(f"s_lshl_b32 s49, s{reg}, 3\ns_lshr_b64 s[56:57], s[50:51], s49\ns_and_b32 s{d}, s56, 0xff\ns_bfe_u32 s{d+1}, s56, 0x80008\ns_sub_u32 s{d+1}, s{d+1}, s{d}")
    e("v_and_b32 v94, 15, v0\nv_add_u32 v96, s54, v94         ; column j")
    e("v_lshrrev_b32 v95, 2, v0\nv_and_b32 v95, 12, v95\nv_add_u32 v97, s52, v95")
    e("v_mul_u32_u24 v98, 200, v97\nv_lshl_add_u32 v98, v96, 1, v98")
    e("v_mul_u32_u24 v99, 200, v96\nv_lshl_add_u32 v99, v97, 1, v99")
    e("s_cmp_eq_u32 s46, s47\ns_cselect_b32 s49, 0x100000, 0\nv_add_u32 v99, s49, v99   ; diagonal tile: no transposed part")
    for r in range(4): e(f"buffer_load_ushort v{128+r}, v98, s[36:39], 0 offen offset:{200*r}", tag="ua")
    e("buffer_load_dwordx2 v[132:133], v99, s[36:39], 0 offen", tag="ub")
def prod_finish_u(e):
    e(f"s_lshl_b32 s48, s48, 10\ns_add_u32 s48, s48, {WS_U}\nv_lshlrev_b32 v97, 4, v0")
    e("v_cmp_gt_u32 vcc, s55, v94\nv_mov_b32 v99, 64\nv_cndmask_b32 v95, v99, v95, vcc")
    e.need("ua", "ub")
    for r in range(4): e(f"v_lshlrev_b32 v{128+r}, 16, v{128+r}")
    e("v_lshlrev_b32 v134, 16, v132\nv_and_b32 v135, 0xffff0000, v132\nv_lshlrev_b32 v136, 16, v133\nv_and_b32 v137, 0xffff0000, v133")
    for r in range(4):
        e(f"v_add_f32 v{100+r}, v{128+r}, v{134+r}\nv_cmp_gt_u32 vcc, s53, v95\nv_add_u32 v95, 1, v95\nv_cndmask_b32 v{100+r}, 0, v{100+r}, vcc")
    e("buffer_store_dwordx4 v[100:103], v97, s[32:35], s48 offen sc0 sc1", tag="st")

def stamp(e, cfg, k):
    if cfg["stamps"]: e(f"{'s_memtime' if cfg['stamps']==2 else 's_memrealtime'} s[{80+2*k}:{81+2*k}]")

def gen_main(cfg):
    e = Emit()
    N = cfg["sizes"]; assert sum(N) == 100 and len(N) == 7 and all(n % 2 == 0 and n <= 16 for n in N)
    F = [sum(N[:k]) for k in range(8)]
    sst = cfg.get("sst", []); tags = cfg["tags"]; poll = cfg["poll"]; npre = cfg["npre"]; g1pre = cfg["g1pre"]
    assert 1 <= poll <= 16 and npre <= g1pre and tags in (0, 2)
    TSH = cfg["tsh"]
    e.label("L_start")
    e("s_cmp_ge_u32 s2, 256\ns_cbranch_scc1 L_end")
    e("s_load_dwordx16 s[4:19], s[0:1], 0\ns_load_dwordx4 s[20:23], s[0:1], 64")
    if tags: e("s_memrealtime s[64:65]")
    stamp(e, cfg, 0)
    e(f"v_lshrrev_b32 v9, 6, v0\nv_and_b32 v0, 63, v0\nv_readfirstlane_b32 s{sW}, v9\nv_lshlrev_b32 v{vWOFF}, 4, v0")
    e.protect("v0", f"v{vWOFF}", f"s{sW}", "s2", *[f"s{k}" for k in range(4, 24)])
    if cfg["codepf"]:
        e("s_getpc_b64 s[46:47]")
        e.label("L_pc")
        e("s_sub_u32 s46, s46, L_pc-L_start\ns_subb_u32 s47, s47, 0")
        e(f"s_lshr_b32 s48, s2, 3\ns_and_b32 s48, s48, 31\ns_lshl_b32 s48, s48, 10\ns_lshl_b32 s49, s{sW}, 8\ns_add_u32 s48, s48, s49\ns_sub_u32 s48, s48, 1280")
        e(f"s_lshl_b32 s49, s{sW}, 9\nv_lshl_add_u32 v2, v0, 7, s49\nv_lshl_add_u32 v3, v0, 7, s48\ns_mul_i32 s49, s{sW}, 768\ns_add_u32 s49, s49, L_prod-L_start-512\nv_lshl_add_u32 v5, v0, 7, s49")
        e("v_cmp_gt_u32 vcc, 4, v0\nv_cndmask_b32 v5, v5, v2, vcc\nv_cmp_gt_u32 vcc, 10, v0\nv_cndmask_b32 v5, v3, v5, vcc\nv_min_u32 v5, L_codeend-L_start-4, v5")
        e(f"s_mov_b64 exec, 0xfff\nglobal_load_dword v{vPF}, v5, s[46:47]\ns_mov_b64 exec, -1")
    e(f"s_mul_i32 s{sWREG}, s{sW}, {WREG}\ns_lshl_b32 s{sIDX}, s2, 6\ns_lshl_b32 s{sT}, s{sW}, 4\ns_add_u32 s{sIDX}, s{sIDX}, s{sT}\ns_mul_i32 s{sIDX}, s{sIDX}, 400")
    e(f"s_add_u32 m0, s{sWREG}, {BUF}\ns_mov_b32 s26, 6553600\ns_mov_b32 s27, 0x00020000\ns_add_u32 s{sT}, s{sIDX}, 4096")
    e.protect(f"s{sWREG}", f"s{sIDX}", "s26", "s27")
    if tags == 1:
        e(f"s_cmp_eq_u32 s{sW}, 3\ns_cselect_b32 s{sPG}, s2, 255\ns_cmp_lt_u32 s{sPG}, 228")
    else:
        e(f"s_lshr_b32 s{sPG}, s2, 3\ns_lshl_b32 s{sPG}, s{sPG}, 2\ns_and_b32 s46, s2, 3\ns_or_b32 s{sPG}, s{sPG}, s46\ns_and_b32 s46, s2, 4\ns_lshl_b32 s46, s46, 6\ns_or_b32 s{sPG}, s{sPG}, s46")
        e(f"s_cmp_lt_u32 s{sPG}, {NPROD}")
    e("s_waitcnt lgkmcnt(0)")
    e("s_cbranch_scc1 L_prod")
    def idx_dma(setup):
        if setup: e(f"s_add_u32 m0, s{sWREG}, {BUF}\ns_add_u32 s{sT}, s{sIDX}, 4096")
        e("s_mov_b32 s24, s4\ns_and_b32 s25, s5, 0xffff")
        for k in range(7):
            if k == 4: e("s_add_u32 m0, m0, 4096")
            if k == 6: e("s_mov_b64 exec, 0xffff")
            e(f"buffer_load_dwordx4 v{vWOFF}, s[24:27], s{sIDX if k < 4 else sT} offen offset:{1024*(k%4)} nt lds", tag="idx")
        e("s_mov_b64 exec, -1")
    shifted = set(); gcount = [0]
    def Ird(p):
        for m in range(4): e(f"ds_read_b32 v{IREG(p,m)}, v5 offset:{1600*m+4*F[p]}", tag=("I", p, m))
    def dead_mask(p):
        if N[p] < 16: e(f"v_cmp_le_u32 vcc, {4*N[p]}, v0\nv_bfrev_b32 v2, 1\nv_cndmask_b32 v{vDEAD}, 0, v2, vcc")
    def shift_idx(p, m):
        if (p, m) in shifted: return
        shifted.add((p, m)); e.need(("I", p, m))
        e(f"v_lshlrev_b32 v{IREG(p,m)}, 6, v{IREG(p,m)}" if N[p] == 16 else f"v_lshl_or_b32 v{IREG(p,m)}, v{IREG(p,m)}, 6, v{vDEAD}")
    def G(p, s):
        t = 2 + (gcount[0] & 1); gcount[0] += 1
        shift_idx(p, s >> 2); r = IREG(p, s >> 2); j = s & 3
        e(f"s_add_u32 m0, s{sWREG}, {(p&1)*BUF + s*SS}")
        e(f"v_add_u32_dpp v{t}, v{r}, v{vCOFF} quad_perm:[{j},{j},{j},{j}] row_mask:0xf bank_mask:0xf")
        e(f"buffer_load_dwordx4 v{t}, s[28:31], 0 offen lds", tag=("G", p, s))
    def Wtxt(j): return f"buffer_load_dwordx4 {q4('v', Wq(j))}, v{vWOFF}, s[32:35], s{(sWOFF, sWOFF2)[(j>>2)&1]} offen offset:{(j%4)*1024} sc1"
    def Winc(j): return f"s_add_u32 s{(sWOFF, sWOFF2)[(j>>2)&1]}, s{(sWOFF, sWOFF2)[(j>>2)&1]}, 8192"
    def W(j):
        e(Wtxt(j), tag=("W", j))
        if j % 4 == 3: e(Winc(j))
    def Udma():
        e(f"s_add_u32 s{sT}, s{sW1K}, {WS_U}")
        for k in range(7):
            e(f"s_add_u32 m0, s{sW1K}, {U_BASE + 4096*k}")
            e(f"buffer_load_dwordx4 v{vWOFF}, s[32:35], s{sT} offen sc1 lds", tag="Udma")
            if k < 6: e(f"s_add_u32 s{sT}, s{sT}, 4096")
    polltxt = (f"buffer_load_dwordx4 {q4('v', vPOLL)}, v{vPADR}, s[32:35], 0 offen sc1" if tags == 1 else f"buffer_load_dword v{vPOLL}, v{vPADR}, s[32:35], 0 offen sc1" if tags else f"buffer_load_dword v{vPOLL}, v{vPADR}, s[68:71], 0 offen sc1")
    keep = [f"v{vCOFF}", f"v{vPADR}"] + [f"s{k}" for k in list(range(24, 26)) + list(range(28, 36)) + list(range(68, 72))]
    def opening(x):
        shifted.clear(); gcount[0] = 0
        srd(e, 28, 6, 6400000)
        e("v_and_b32 v2, 3, v0\nv_lshrrev_b32 v3, 4, v0")
        e(f"v_sub_u32 v{vCOFF}, 0, v3\nv_and_b32 v{vCOFF}, 3, v{vCOFF}\nv_xor_b32 v{vCOFF}, v{vCOFF}, v2\nv_lshlrev_b32 v{vCOFF}, 4, v{vCOFF}")
        e(f"v_mul_u32_u24 v5, 400, v2\nv_lshrrev_b32 v6, 2, v0\nv_lshl_add_u32 v5, v6, 2, v5\ns_add_u32 s{sT}, s{sWREG}, {BUF}\nv_add_u32 v5, s{sT}, v5")
        dead_mask(0)
        if not x: e.need("idx")
        Ird(0); Ird(1); Ird(2)
        if not sst: stamp(e, cfg, 1)
        for s in range(16):
            G(0, s)
            if s == 0:
                if not x: srd(e, 32, 22, WS_SIZE); srd(e, 68, 20, 256)
                if tags:
                    e(f"s_lshr_b64 s[64:65], s[64:65], 9\ns_mov_b32 s{sNOW}, s64")
                    if tags == 1: e(f"v_min_u32 v{vPADR}, 56, v0\nv_lshrrev_b32 v6, 1, v{vPADR}\nv_and_b32 v{vPADR}, 1, v{vPADR}\nv_lshlrev_b32 v{vPADR}, 4, v{vPADR}\nv_lshl_add_u32 v{vPADR}, v6, 7, v{vPADR}\nv_add_u32 v{vPADR}, {WS_TAG}, v{vPADR}")
                    else: e(f"v_min_u32 v{vPADR}, {NPROD-1}, v0\nv_lshrrev_b32 v6, {TSH}, v{vPADR}\nv_and_b32 v{vPADR}, {(1<<TSH)-1}, v{vPADR}\nv_lshlrev_b32 v{vPADR}, 2, v{vPADR}\nv_lshl_add_u32 v{vPADR}, v6, 7, v{vPADR}\nv_add_u32 v{vPADR}, {WS_TAG}, v{vPADR}")
                else:
                    e(f"s_and_b32 s{sT}, s2, 1\ns_lshl_b32 s{sT}, s{sT}, 7\nv_mov_b32 v{vPADR}, s{sT}")
                e.protect("v5", *keep)
            if s == 3: e.need(("I", 2, 3)); Ird(3); Ird(4)
            if s == 7: e.need(("I", 4, 3)); Ird(5); Ird(6)
            if s + 1 == poll and not (tags == 1 and x):
                e(f"s_cmp_lg_u32 s{sW}, 0\ns_cbranch_scc1 L_np{x}")
                e.uncounted(polltxt)
                e.label(f"L_np{x}")
        e(f"s_lshl_b32 s{sW1K}, s{sW}, 10\ns_mul_i32 s{sWOFF}, s{sW}, {WSTRIDE}\ns_add_u32 s{sWOFF2}, s{sWOFF}, 4096")
        e(f"v_lshrrev_b32 v2, 5, v0\nv_lshlrev_b32 v{vH}, 4, v2\ns_lshr_b32 s{sT}, s{sW}, 1\ns_lshl_b32 s{sT}, s{sT}, 7")
        srd(e, 36, 12, 256)
        for i in range(4): e(f"buffer_load_dwordx4 {q4('v', 96+4*i)}, v{vH}, s[36:39], s{sT} offen offset:{32*i}", tag="b1")
        srd(e, 36, 16, 2)
        e(f"buffer_load_ushort v{vB2}, off, s[36:39], 0", tag="b2")
        srd(e, 36, 14, 256)
        e(f"s_mov_b32 m0, {W2_LDS}\nv_lshlrev_b32 v2, 2, v0\nbuffer_load_dword v2, s[36:39], 0 offen lds", tag="w2")
        if x: e("s_branch L_join")
    idx_dma(False)
    opening("")
    e.label("L_join")
    e("s_nop 1")
    e.protect(f"v{vH}", f"s{sW1K}", f"v{vB2}", f"v{vPF}", *[f"v{vPOLL+k}" for k in range(4)], *[f"v{96+k}" for k in range(16)])
    e("v_lshrrev_b32 v3, 4, v0")
    e(f"v_bfe_u32 v2, v0, 2, 2\nv_sub_u32 v6, 0, v2\nv_and_b32 v6, 3, v6\nv_xor_b32 v6, v6, v3\nv_and_b32 v{vP0}, 15, v0\nv_lshlrev_b32 v{vP0}, 6, v{vP0}\nv_lshl_add_u32 v{vP0}, v6, 4, v{vP0}")
    e(f"v_add_u32 v{vP0}, s{sWREG}, v{vP0}\nv_add_u32 v{vP1}, {BUF}, v{vP0}")
    e(f"v_and_b32 v{vS}, 31, v0\nv_mul_u32_u24 v{vS}, {SS}, v{vS}")
    e(f"v_add_u32 v{vU}, {U_BASE}, v{vWOFF}")
    e.protect(f"v{vP0}", f"v{vP1}", f"v{vU}")
    for s in range(16): e(f"v_mov_b32 v{PACC(s)}, 0")
    for p in range(1, 7):
        dead_mask(p)
        for m in range(4): shift_idx(p, m)
    for s in range(npre): G(1, s)
    e(f"s_cmp_lg_u32 s{sW}, 0\ns_cbranch_scc1 L_ready")
    e.release(*[f"v{vPOLL+k}" for k in range(4)])
    def tagcheck(span):
        for k in range(4 if tags == 1 else 1): e(f"v_subrev_u32 v{vPOLL+k}, s{sBASE}, v{vPOLL+k}")
        if tags == 1: e(f"v_max3_u32 v{vPOLL}, v{vPOLL}, v{vPOLL+1}, v{vPOLL+2}\nv_max_u32 v{vPOLL}, v{vPOLL}, v{vPOLL+3}")
        e(f"v_cmp_lt_u32 vcc, {span}, v{vPOLL}\ns_nop 0\ns_cbranch_vccz L_ready")
    if tags: e(f"s_sub_u32 s{sBASE}, s{sNOW}, 2")
    e(f"s_waitcnt vmcnt({16 - poll + 6 + npre})")
    if tags: tagcheck(4)
    else: e(f"v_cmp_le_u32 vcc, {NPROD}, v{vPOLL}\ns_nop 0\ns_cbranch_vccnz L_ready")
    e(f"s_mov_b32 s{sT}, 0")
    e.label("L_spin")
    e.uncounted(polltxt)
    if tags:
        e.uncounted(f"buffer_load_dword v{vDEAD}, off, s[68:71], 0 sc1")
        e(f"s_memrealtime s[64:65]\ns_add_u32 s{sT}, s{sT}, 1\ns_waitcnt vmcnt(0) lgkmcnt(0)\nv_cmp_le_u32 vcc, {NPROD}, v{vDEAD}\ns_lshr_b64 s[64:65], s[64:65], 9\ns_cbranch_vccnz L_ready")
        e(f"s_sub_u32 s72, s64, s{sBASE}\ns_add_u32 s72, s72, 1")
        tagcheck("s72")
    else:
        e(f"s_add_u32 s{sT}, s{sT}, 1\ns_waitcnt vmcnt(0)\nv_cmp_le_u32 vcc, {NPROD}, v{vPOLL}\ns_nop 0\ns_cbranch_vccnz L_ready")
    e(f"s_sleep 8\ns_cmp_lt_u32 s{sT}, 0x20000\ns_cbranch_scc1 L_spin")
    e.label("L_ready")
    e("s_barrier")
    if not sst: stamp(e, cfg, 2)
    for j in range(4): W(j)
    Udma()
    for j in range(4, 8): W(j)
    for s in range(npre, g1pre): G(1, s)
    e.need("b1", "b2", "w2")
    e.release(f"v{vB2}", f"v{vPF}", f"v{vPADR}", "v5")
    e(f"s_and_b32 s{sT}, s{sW}, 1\ns_mul_i32 s{sT}, s{sT}, 0x02020000\ns_add_u32 s{sSEL}, s{sT}, 0x01000c0c\nv_lshlrev_b32 v{vB2}, 16, v{vB2}")
    for r in range(16):
        e(f"v_perm_b32 v{ACC+r}, v{96+r}, v{96+r}, s{sSEL}\nv_mov_b32 v{ACC+16+r}, v{ACC+r}")
    e(f"v_readfirstlane_b32 s{sB2}, v{vB2}")
    e.release(*[f"v{96+k}" for k in range(16)])
    e.protect(f"s{sSEL}", f"s{sB2}")
    e.need(("G", 0, 15), "Udma")
    e("s_barrier")
    if cfg["stamps"] and -1 in cfg["stamp_stages"]: stamp(e, cfg, 3 + cfg["stamp_stages"].index(-1))

    stage_of = lambda f: max(p for p in range(7) if F[p] <= f)
    scal, mem, valu, fm, gq = deque(), deque(), deque(), deque(), deque()
    slot = [0]; tile_n = [0]; nextU = [0]; deadU = set(); gstate = [None]
    def Axad(f):
        j = f - F[stage_of(f)]
        return [f"v_xad_u32 v{vA0}, v{vH}, {X(j)<<4}, v{vS}", f"v_xad_u32 v{vA1}, v{vH}, {(X(j)^2)<<4}, v{vS}"] if j % 4 == 0 else []
    def Ard(f):
        j = f - F[stage_of(f)]
        return [(f"ds_read_b128 {q4('v', Aq(f,h,t))}, v{vA0+h} offset:{t*32*SS + j*64}", ("A", f, h, t)) for h in range(2) for t in range(2)]
    def frag(s, q): return E(s, q) if q < 5 else Tq(q, s)
    def Prd(p, s):
        ops = [(f"ds_read_b128 {frag(s,p)}, v{vP0 + (p&1)} offset:{s*SS}", ("P", p, s))]
        if p == 6: ops.insert(0, (f"ds_read_b128 {frag(s,5)}, v{vP1} offset:{s*SS}", None))
        return ops
    def pump_U():
        while nextU[0] < 28 and (nextU[0] < 8 or (nextU[0] - 8) in deadU):
            T = nextU[0]; mem.append((f"ds_read_b128 {q4('v', Uq(T))}, v{vU} offset:{T*1024}", ("U", T))); nextU[0] += 1
    def pump_G():
        if gstate[0] is None and gq:
            p, s = gq.popleft(); t = 2 + (gcount[0] & 1); gcount[0] += 1; j = s & 3
            st = dict(left=2, load=(f"buffer_load_dwordx4 v{t}, s[28:31], 0 offen lds", ("G", p, s)))
            gstate[0] = st
            def done():
                st["left"] -= 1
                if st["left"] == 0: st["ready_slot"] = slot[0] + 1
            scal.append((f"s_add_u32 m0, s{sWREG}, {(p&1)*BUF + s*SS}", done, slot[0]))
            valu.append((f"v_add_u32_dpp v{t}, v{IREG(p, s>>2)}, v{vCOFF} quad_perm:[{j},{j},{j},{j}] row_mask:0xf bank_mask:0xf", done))
    def emit_scal(upto=1 << 30):
        for it in scal:
            if it[2] <= upto:
                scal.remove(it); e(it[0])
                if it[1]: it[1]()
                return True
        return False
    def emit_valu():
        it = valu.popleft()
        if isinstance(it, str): e(it)
        else:
            e(it[0]); it[1]()
    def emit_mem():
        it = mem.popleft()
        if it[1] and ((cfg.get("noard") and it[1][0] == "A") or (cfg.get("noprd") and it[1][0] == "P")): e.tags[it[1]] = ("lg", e.lg_n); return 0
        if it[1] and cfg.get("now") and it[1][0] == "W": e.tags[it[1]] = ("vm", e.vm_n); return 0
        e(it[0], tag=it[1])
        return 0.8 if it[0].startswith("ds_") else 0.3
    def emit_gload():
        st = gstate[0]
        if st is not None and st["left"] == 0 and st["ready_slot"] <= slot[0]:
            e(st["load"][0], tag=st["load"][1]); gstate[0] = None; pump_G(); return 0.75
        return 0
    def force_G(tag):
        while tag not in e.tags:
            assert gstate[0] is not None, tag
            st = gstate[0]
            while st["left"]:
                if scal: emit_scal()
                if st["left"] and valu: emit_valu()
            st["ready_slot"] = slot[0]; emit_gload()
    def ensure(tg):
        for t in tg:
            if t[0] == "G": force_G(t)
            while t not in e.tags: emit_mem()
    def fm_ready(): return fm and (e.pos - fm[0]["pos"] - 1) >= 8
    def emit_fm():
        t = fm[0]; k = t["k"]
        if k == 0: ensure([("U", t["T"])]); e.need(("U", t["T"]))
        if not cfg.get("nofma"): e(f"v_fmac_f32 v{t['acc']}, v{t['D']+k}, v{Uq(t['T'])+k}")
        t["k"] += 1
        if t["k"] == 4:
            fm.popleft()
            if t["last"]: deadU.add(t["T"]); pump_U()
    def flush_fm(upto):
        while fm and fm[0]["n"] <= upto:
            if not fm_ready() and valu: emit_valu()
            else: emit_fm()
    extra = deque()
    red = []
    P = PACC
    for s in range(8): red += [f"v_permlane32_swap_b32 v{P(s)}, v{P(s+8)}"]
    for s in range(8): red += [f"v_add_f32 v{P(s)}, v{P(s)}, v{P(s+8)}"]
    for s in range(4): red += [f"v_permlane16_swap_b32 v{P(s)}, v{P(s+4)}"]
    for s in range(4): red += [f"v_add_f32 v{P(s)}, v{P(s)}, v{P(s+4)}"]
    for s in range(2): red += [f"v_add_f32_dpp v{P(s+4)}, v{P(s)}, v{P(s)} row_ror:8 row_mask:0xf bank_mask:0xf"]
    for s in range(2): red += [f"v_add_f32_dpp v{P(s+4)}, v{P(s+2)}, v{P(s+2)} row_ror:8 row_mask:0xf bank_mask:0xc"]
    red += [f"v_add_f32_dpp v{P(0)}, v{P(4)}, v{P(4)} row_half_mirror row_mask:0xf bank_mask:0xf"]
    red += [f"v_and_b32 v3, 60, v0", f"v_add_f32_dpp v{P(0)}, v{P(5)}, v{P(5)} row_half_mirror row_mask:0xf bank_mask:0xa"]
    red += [f"s_lshl_b32 s{sT}, s{sW}, 6", f"s_add_u32 s{sT}, s{sT}, {PP_LDS}"]
    red += [f"v_add_f32_dpp v17, v17, v17 quad_perm:[1,0,3,2] row_mask:0xf bank_mask:0xf", f"v_add_u32 v3, s{sT}, v3"]
    red += [f"s_lshr_b32 s{sT}, s{sW}, 1", f"v_add_f32_dpp v17, v17, v17 quad_perm:[2,3,0,1] row_mask:0xf bank_mask:0xf"]
    W2R = 64
    red += [f"s_lshl_b32 s{sT}, s{sT}, 7", f"s_add_u32 s{sT}, s{sT}, {W2_LDS}", f"v_add_u32 v2, s{sT}, v{vH}"]
    red += ["ds_write_b32 v3, v17"]
    red += [f"ds_read_b128 {q4('v', W2R+4*i)}, v2 offset:{32*i}" for i in range(4)]
    red += [f"s_mov_b32 s60, {hex(f2u(K2))}", f"s_mov_b32 s61, {hex(f2u(K2))}", f"v_mov_b32 v48, {hex(f2u(K1))}", f"v_mov_b32 v49, {hex(f2u(K1))}", "v_mov_b32 v50, 1.0", "v_mov_b32 v51, 1.0"]
    red += [f"s_mov_b32 s36, s18", "s_and_b32 s37, s19, 0xffff", "s_mov_b32 s38, 32768", "s_mov_b32 s39, 0x00020000"]

    LAG = cfg["plag"]; GEND = cfg["gend"]
    units = [(cfg["p0off"] + s * (N[0] - 1 - cfg["p0off"]) / 16.0, 0, s) for s in range(16)]
    for p in range(1, 7):
        units += [(F[p - 1] + LAG + s * N[p - 1] / 16.0, p, s) for s in range(16)]
    units.sort()
    ops = []
    for f in range(100):
        for k in range(4): ops.append(dict(t=f + k / 4.0 - 1e-4, kind="M", f=f, h=k >> 1, tt=k & 1))
    for u, (t0, p, s) in enumerate(units):
        t1 = units[u + 1][0] if u + 1 < len(units) else t0 + (p + 1) * 0.16
        for k in range(p + 1): ops.append(dict(t=t0 + (k + 0.5) * (t1 - t0) / (p + 1), kind="P", u=u, k=k, p=p, s=s))
    ops.sort(key=lambda o: o["t"])
    gt = []
    for p in range(1, 7):
        for s in range(16):
            if p == 1 and s < g1pre: continue
            t = F[p - 1] - 1 + s * (N[p - 1] - GEND) / 15.0
            if p == 1: t = (s - g1pre) * (N[0] - 1 - GEND) / max(1.0, 15.0 - g1pre)
            gt.append((t, p, s))
    gt = deque(sorted(gt))
    barriers_done = set()
    for o in ops:
        if o["kind"] == "M":
            f, h = o["f"], o["h"]
            o["needs"] = [("A", f, h, 1), ("W", 2 * f + h)] if o["tt"] == 0 else []
        else: o["needs"] = [("P", o["p"], o["s"])] if o["k"] == 0 else []
    pump_U()
    for x in Axad(0): e(x)
    mem.extend(Ard(0)); mem.extend(Prd(units[0][1], units[0][2]))
    while mem: emit_mem()
    red_queued = False
    for k, o in enumerate(ops):
        slot[0] = k
        ensure(o["needs"]); e.need(*o["needs"])
        gate = []
        if o["kind"] == "M":
            f, h, tt = o["f"], o["h"], o["tt"]
            if h == 0 and tt == 0 and f in sst: stamp(e, cfg, 1 + sst.index(f))
            c = f"v[{ACC+16*tt}:{ACC+16*tt+15}]"
            if not cfg.get("nom"): e(f"v_mfma_f32_32x32x16_bf16 {c}, {q4('v', Wq(2*f+h))}, {q4('v', Aq(f,h,tt))}, {c}")
            j = 2 * f + h + 8
            if tt == 1 and j < 200:
                if j % 4 == 0:
                    for it in [x for x in scal if x[0] == Winc(j)]: scal.remove(it); e(it[0])
                mem.appendleft((Wtxt(j), ("W", j)))
                if j % 4 == 3: scal.append((Winc(j), None, k + 1))
            if h == 0 and tt == 0 and f < 99:
                while any(isinstance(x, str) for x in valu): emit_valu()
                assert (f + 1 not in F[1:7]) or (F.index(f + 1) - 1) in barriers_done
                mem.extend(Ard(f + 1))
            if h == 1 and tt == 0 and f < 98:
                while any(m[1] and m[1][0] == "A" for m in mem): emit_mem()
                if f + 2 in F: valu.append(f"{'v_add_u32' if stage_of(f) % 2 == 0 else 'v_subrev_u32'} v{vS}, {BUF}, v{vS}")
                valu.extend(Axad(f + 2))
            budget = 6
        else:
            n = tile_n[0]; flush_fm(n - 3)
            q, s = o["p"], o["s"]
            if not cfg.get("nop"): e(f"v_mfma_f32_16x16x32_bf16 {q4('v', Dq(n))}, {frag(s, o['k'])}, {frag(s, q)}, 0")
            fm.append(dict(n=n, pos=e.pos - 1, k=0, D=Dq(n), T=Tidx(o["k"], q), acc=PACC(s), last=(s == 15))); tile_n[0] += 1
            if o["k"] == 0 and o["u"] + 1 < len(units):
                _, q2, s2 = units[o["u"] + 1]
                gate = [("G", q2, s2)]; ensure(gate); mem.extend(Prd(q2, s2))
            budget = 2
        nxt = ops[k + 1] if k + 1 < len(ops) else None
        before = len(e.lines)
        bar = nxt and nxt["kind"] == "M" and nxt["h"] == 0 and nxt["tt"] == 0 and (nxt["f"] + 1) in F[1:7]
        if bar:
            pb = F.index(nxt["f"] + 1) - 1
            held = [m for m in mem if (m[1] is None or m[1][0] == "P") and gate]
            for m in held: mem.remove(m)
            if gate: e.need(*gate)
            fb = nxt["f"]
            want = [("A", fb, h, t) for h in range(2) for t in range(2)] + [("G", pb + 1, 15)] + nxt["needs"]
            if pb < 5: want += [("P", pb, s) for s in range(16)]
            ensure(want); e.need(*want)
            e("s_barrier")
            barriers_done.add(pb)
            mem.extend(held)
            if cfg["stamps"] and pb in cfg["stamp_stages"]: stamp(e, cfg, 3 + cfg["stamp_stages"].index(pb))
        else:
            want = list(gate)
            if nxt and all(t in e.tags for t in nxt["needs"]): want += nxt["needs"]
            e.need(*want)
        while gt and gt[0][0] <= o["t"] and (gt[0][1] < 2 or (gt[0][1] - 2) in barriers_done):
            _, gp, gs = gt.popleft(); gq.append((gp, gs))
        pump_G()
        if len(e.lines) == before: emit_scal(k)
        budget -= emit_gload()
        nm = 0
        while mem and nm < (4 if o["kind"] == "M" else 2): budget -= emit_mem(); nm += 1
        if not red_queued and tile_n[0] == 448 and not fm:
            red_queued = True; extra.extend(red)
        while budget > 0.5:
            if valu: emit_valu()
            elif fm_ready(): emit_fm()
            elif emit_scal(k - 1): pass
            elif extra: e(extra.popleft())
            elif fm and tile_n[0] == 448: emit_fm()
            else: break
            budget -= 1
        if nxt and nxt["kind"] == "P": flush_fm(tile_n[0] - 3)
    assert not gt and not gq and gstate[0] is None and not scal
    while mem: emit_mem()
    while valu: emit_valu()
    flush_fm(1 << 30)
    if not red_queued: extra.extend(red)
    while extra: e(extra.popleft())
    stamp(e, cfg, 6)
    e.drain(vm=False)
    TA = [96, 98, 100, 102]; WF = [104, 106]; M = [12, 14]
    for r in range(0, 16, 2):
        wf = WF[(r >> 1) & 1]
        e(f"v_perm_b32 v{wf}, v{W2R+r}, v{W2R+r}, s{sSEL}\nv_perm_b32 v{wf+1}, v{W2R+r+1}, v{W2R+r+1}, s{sSEL}")
        x = [f"v[{ACC+16*t+r}:{ACC+16*t+r+1}]" for t in range(2)]
        tb = [TA[2 * ((r >> 1) & 1) + t] for t in range(2)]
        T = [f"v[{b}:{b+1}]" for b in tb]
        for t in range(2): e(f"v_pk_mul_f32 {T[t]}, {x[t]}, {x[t]}")
        for t in range(2): e(f"v_pk_fma_f32 {T[t]}, {T[t]}, s[60:61], v[48:49]")
        for t in range(2): e(f"v_pk_mul_f32 {T[t]}, {T[t]}, {x[t]}")
        for t in range(2): e(f"v_exp_f32 v{tb[t]}, v{tb[t]}\nv_exp_f32 v{tb[t]+1}, v{tb[t]+1}")
        for t in range(2): e(f"v_pk_mul_f32 {x[t]}, {x[t]}, v[{wf}:{wf+1}]")
        for t in range(2): e(f"v_pk_add_f32 {T[t]}, {T[t]}, v[50:51]")
        for t in range(2): e(f"v_rcp_f32 v{tb[t]}, v{tb[t]}\nv_rcp_f32 v{tb[t]+1}, v{tb[t]+1}")
        for t in (0, 1):
            m = f"v[{M[t]}:{M[t]+1}]"
            e(f"v_pk_mul_f32 {m}, {x[t]}, {T[t]}" if r == 0 else f"v_pk_fma_f32 {m}, {x[t]}, {T[t]}, {m}")
    e(f"v_lshlrev_b32 v2, 2, v0\ns_lshl_b32 s{sT}, s{sW}, 8\ns_add_u32 s{sT}, s{sT}, {MP_LDS}\nv_add_f32 v12, v12, v13\nv_add_f32 v14, v14, v15\nv_add_u32 v3, s{sT}, v2")
    e("v_permlane32_swap_b32 v12, v14\nv_add_f32 v12, v12, v14")
    e("ds_write_b32 v3, v12")
    e.drain(vm=False)
    e("s_barrier")
    e(f"s_cmp_lg_u32 s{sW}, 0\ns_cbranch_scc1 L_end")
    e(f"v_add_u32 v3, {MP_LDS}, v2")
    for k in range(5): e(f"ds_read_b32 v{12+k}, v3 offset:{256*k}")
    e(f"s_lshl_b32 s{sT}, s2, 7\nv_lshlrev_b32 v2, 1, v0")
    e.drain(vm=False)
    e(f"v_add_f32 v12, v12, v13\nv_add_f32 v14, v14, v15\nv_add_f32 v16, s{sB2}, v16\nv_add_f32 v12, v12, v14\nv_add_f32 v12, v12, v16")
    e("v_cvt_pk_bf16_f32 v12, v12, v12")
    e(f"buffer_store_short v12, v2, s[36:39], s{sT} offen")
    if cfg["stamps"]:
        stamp(e, cfg, 7)
        e("s_waitcnt lgkmcnt(0)\nv_cmp_eq_u32 vcc, 0, v0\ns_and_saveexec_b64 s[46:47], vcc")
        srd(e, 36, 22, STAMP_OFF + 256 * 64)
        e(f"s_lshl_b32 s{sT}, s2, 6\ns_add_u32 s{sT}, s{sT}, {STAMP_OFF}")
        for k in range(8):
            e(f"v_mov_b32 v2, s{80+2*k}\nv_mov_b32 v3, s{81+2*k}\nbuffer_store_dwordx2 v[2:3], off, s[36:39], s{sT} offset:{8*k}\ns_nop 1")
    e.label("L_end")
    e("s_endpgm")
    e.label("L_prod")
    e.vm_n = e.vm_done = e.lg_n = e.lg_done = 0
    e.release(*keep, f"v{vH}", f"s{sW1K}", f"v{vP0}", f"v{vP1}", f"v{vU}", f"s{sSEL}", f"s{sB2}")
    e("s_nop 4")
    srd(e, 32, 22, WS_SIZE); srd(e, 68, 20, 256)
    if True:
        e(f"s_cmp_ge_u32 s{sPG}, {NPROD_W}\ns_cbranch_scc1 L_produ")
        e(f"s_and_b32 s46, s{sW}, 1\ns_lshr_b32 s47, s{sW}, 1\ns_lshl_b32 s48, s{sPG}, 1\ns_add_u32 s47, s47, s48")
        prod_issue_w(e); prod_finish_w(e); e("s_branch L_prodst")
        e.label("L_produ")
        e(f"s_sub_u32 s48, s{sPG}, {NPROD_W}\ns_lshl_b32 s48, s48, 2\ns_add_u32 s48, s48, s{sW}")
        prod_issue_u(e, F); prod_finish_u(e)
        e.label("L_prodst")
        idx_dma(True)
        e(f"s_waitcnt vmcnt(7)\ns_barrier\ns_cmp_lg_u32 s{sW}, 0\ns_cbranch_scc1 L_nosig")
        if cfg.get("pst"): stamp(e, cfg, 4)
        if tags:
            e(f"s_lshr_b32 s46, s{sPG}, {TSH}\ns_lshl_b32 s46, s46, 7\ns_and_b32 s47, s{sPG}, {(1<<TSH)-1}\ns_lshl_b32 s47, s47, 2\ns_add_u32 s46, s46, s47\ns_add_u32 s46, s46, {WS_TAG}")
            e("s_lshr_b64 s[48:49], s[64:65], 9\nv_mov_b32 v98, s48\ns_mov_b64 exec, 1\nbuffer_store_dword v98, off, s[32:35], s46 sc0 sc1")
            if cfg.get("pst"): e("s_waitcnt vmcnt(0)"); stamp(e, cfg, 5)
        e("s_mov_b64 exec, 3\nv_lshlrev_b32 v96, 7, v0\nv_mov_b32 v97, 1\nbuffer_atomic_add v97, v96, s[68:71], 0 offen sc1\ns_mov_b64 exec, -1")
        e(f"s_waitcnt vmcnt({2 if tags else 1})\ns_branch L_sigdone")
        e.label("L_nosig")
        e("s_waitcnt vmcnt(0)")
        e.label("L_sigdone")
    e.vm_n = e.vm_done = 0
    opening("p")
    e.label("L_codeend")
    return e

def kernel(name, e):
    return f".globl {name}\n.p2align 8\n.type {name},@function\n{name}:\n" + e.text()

def build(**kw):
    cfg = dict(stamps=False, codepf=True, stamp_stages=[-1, 1, 4], sizes=[16, 16, 16, 16, 14, 12, 10],
               tags=0, tsh=2, poll=15, npre=0, g1pre=4, plag=4, p0off=2, gend=5)
    cfg.update(kw)
    m = gen_main(cfg)
    sys.stderr.write(f"instructions {sum(m.counts.values())}, padded wait states {m.nops}, waits {m.counts.get('s_waitcnt')}\n")
    return file_text([f"; @launch grid=(256,1,1) block=(256,1,1) lds={LDS_SIZE}"], kernel(KN, m), [descriptor(KN, 512, 256)])
if __name__ == "__main__":
    out = sys.argv[1]; kw = eval("dict(" + (sys.argv[2] if len(sys.argv) > 2 else "") + ")")
    open(out, "w").write(build(**kw))
```

```python
import re
REG = re.compile(r"^(-?)(abs\()?([vas])(\d+)\)?$|^([vas])\[(\d+):(\d+)\]$")
def regs_of(op):
    op = op.strip()
    if op in ("vcc",): return ["vcc"]
    if op in ("vcc_lo", "vcc_hi"): return ["vcc"]
    if op in ("exec", "exec_lo", "exec_hi"): return ["exec"]
    if op == "m0": return ["m0"]
    m = REG.match(op)
    if not m: return []
    if m.group(3): return [m.group(3) + m.group(4)]
    return [m.group(5) + str(i) for i in range(int(m.group(6)), int(m.group(7)) + 1)]
TRANS = ("v_exp_f32", "v_log_f32", "v_rcp_f32", "v_rsq_f32", "v_sqrt_f32", "v_sin_f32", "v_cos_f32")
class Emit:
    def __init__(self):
        self.lines = []; self.pos = 0
        self.vm_n = 0; self.vm_done = 0; self.lg_n = 0; self.lg_done = 0
        self.tags = {}
        self.mfma_w = {}
        self.mfma_c = {}
        self.valu_w = {}
        self.trans_w = {}
        self.valu_sw = {}
        self.salu_m0 = -99
        self.store_data = {}
        self.nops = 0
        self.protected = {}
        self.counts = {}
    def raw(self, s): self.lines.append(s)
    def label(self, s): self.lines.append(s + ":")
    def comment(self, s): self.lines.append("  ; " + s)
    def nop(self, n):
        while n > 0:
            k = min(n, 16); self.lines.append(f"  s_nop {k-1}"); self.pos += k; n -= k; self.nops += k
    def parse(self, s):
        s = s.split(";")[0].strip()
        mn, _, rest = s.partition(" ")
        ops = [o.strip() for o in re.split(r",(?![^\[]*\])", rest)] if rest else []
        if ops:
            last = ops[-1].split()
            ops[-1] = last[0]; mods = last[1:]
        else: mods = []
        return mn, ops, mods
    def __call__(self, text, tag=None):
        for s in text.split("\n"):
            s = s.strip()
            if not s: continue
            if s.endswith(":"): self.label(s[:-1]); continue
            self.ins(s, tag)
    def protect(self, *regs):
        for r in regs: self.protected[r] = True
    def release(self, *regs):
        for r in regs: self.protected.pop(r, None)
    def uncounted(self, text):
        n = self.vm_n
        self(text)
        self.vm_n = n
    def ins(self, s, tag=None):
        mn, ops, mods = self.parse(s)
        R = [regs_of(o) for o in ops]
        rd, wr = [], []
        kind = "other"; need = 0
        def dist_req(p, req):
            return max(0, req - (self.pos - p - 1))
        ismfma = mn.startswith("v_mfma")
        isvalu = mn.startswith("v_") and not ismfma
        isds = mn.startswith("ds_"); isvm = mn.startswith(("buffer_", "global_"))
        islds_dma = isvm and "lds" in mods or mn.startswith("global_load_lds")
        if ismfma:
            wr = R[0]; rdAB = R[1] + R[2]; rdC = R[3]; rd = rdAB + rdC
            passes = 8 if "32x32x16" in mn else 4 if "16x16x32" in mn else None
            assert passes
            for r in rdAB:
                if r in self.mfma_w: p, ps, _ = self.mfma_w[r]; need = max(need, dist_req(p, {4: 8, 8: 12}[ps]))
            for r in rdC:
                if r in self.mfma_w:
                    p, ps, d = self.mfma_w[r]
                    if d == tuple(rdC) and ps == passes: pass
                    else: need = max(need, dist_req(p, {4: 6, 8: 10}[ps]))
            for r in wr:
                if r in self.mfma_w and r not in rdC:
                    p, ps, d = self.mfma_w[r]
                    if not (d == tuple(wr) and ps == passes): need = max(need, dist_req(p, {4: 8, 8: 12}[ps]))
            for r in rd:
                if r in self.valu_w: need = max(need, dist_req(self.valu_w[r], 2))
            if "exec" in self.valu_sw: need = max(need, dist_req(self.valu_sw["exec"], 4))
        elif isvalu:
            if mn.startswith("v_cmpx"): wr = R[0] + ["exec"]; rd = sum(R[1:], [])
            elif "swap" in mn: wr = R[0] + R[1]; rd = wr
            elif mn.startswith(("v_fmac", "v_dot2c")): wr = R[0]; rd = sum(R, [])
            elif mn.startswith(("v_add_co", "v_addc_co", "v_sub_co")): wr = R[0] + R[1]; rd = sum(R[2:], [])
            else: wr = R[0]; rd = sum(R[1:], [])
            isdpp = "_dpp" in mn
            if isdpp and any(m.startswith("bank_mask") and m != "bank_mask:0xf" for m in mods): rd = rd + wr
            if mn.startswith("v_cndmask") and len(ops) == 3: rd = rd + ["vcc"]
            for r in rd + wr:
                if r in self.mfma_w: p, ps, _ = self.mfma_w[r]; need = max(need, dist_req(p, {4: 8, 8: 12}[ps]))
            for r in wr:
                if r in self.mfma_c: p, ps = self.mfma_c[r]; need = max(need, dist_req(p, {4: 3, 8: 7}[ps]))
                if r in self.store_data: need = max(need, dist_req(self.store_data[r], 2))
            vsrc = [r for r in rd if r[0] in "va" and r != "vcc"]
            if isdpp or "permlane" in mn:
                for r in vsrc:
                    if r in self.valu_w: need = max(need, dist_req(self.valu_w[r], 2))
                if isdpp and "exec" in self.valu_sw: need = max(need, dist_req(self.valu_sw["exec"], 5))
            if mn.startswith(("v_readlane", "v_readfirstlane")):
                for r in vsrc:
                    if r in self.valu_w: need = max(need, dist_req(self.valu_w[r], 1))
                if "exec" in self.valu_sw: need = max(need, dist_req(self.valu_sw["exec"], 4))
            if mn not in TRANS:
                for r in vsrc:
                    if r in self.trans_w: need = max(need, dist_req(self.trans_w[r], 1))
            for r in rd:
                if (r[0] == "s" or r == "vcc") and r in self.valu_sw: need = max(need, dist_req(self.valu_sw[r], 2))
        elif isds:
            if mn.startswith("ds_read"): wr = R[0]; rd = sum(R[1:], [])
            else: rd = sum(R, [])
        elif isvm:
            if islds_dma: rd = sum(R, []); need = max(need, dist_req(self.salu_m0, 1))
            elif "_load" in mn: wr = R[0]; rd = sum(R[1:], [])
            elif "atomic" in mn: rd = sum(R, [])
            else: rd = sum(R, [])
            for r in rd:
                if r[0] == "s" and r in self.valu_sw: need = max(need, dist_req(self.valu_sw[r], 5))
        if isds or isvm:
            for r in rd + wr:
                if r in self.mfma_w: p, ps, _ = self.mfma_w[r]; need = max(need, dist_req(p, {4: 8, 8: 12}[ps]))
            for r in wr:
                if r in self.mfma_c: p, ps = self.mfma_c[r]; need = max(need, dist_req(p, {4: 3, 8: 7}[ps]))
                if r in self.store_data: need = max(need, dist_req(self.store_data[r], 1))
        for m_ in mods:
            if m_.startswith("offset:"):
                v_ = int(m_[7:], 0)
                assert 0 <= v_ <= (65535 if isds else 4095), f"offset out of range: {s}"
        if mn.startswith("s_") and R and mn.split("_")[1] not in ("cmp", "cbranch", "branch", "waitcnt", "nop", "barrier", "endpgm", "sleep", "setprio", "bitcmp1", "bitcmp0"): wr = R[0]
        for r in wr:
            assert r not in self.protected, f"write to protected register {r}: {s}"
        if need: self.nop(need)
        self.lines.append("  " + s)
        p = self.pos
        if mn == "s_nop": self.pos += int(ops[0]) + 1
        else: self.pos += 1
        self.counts[mn] = self.counts.get(mn, 0) + 1
        if ismfma:
            for r in wr: self.mfma_w[r] = (p, passes, tuple(wr)); self.valu_w.pop(r, None)
            for r in rdC: self.mfma_c[r] = (p, passes)
        else:
            for r in wr: self.mfma_w.pop(r, None)
        if isvalu:
            for r in wr:
                if r[0] in "va" and r != "vcc":
                    self.valu_w[r] = p
                    if mn in TRANS: self.trans_w[r] = p
                    else: self.trans_w.pop(r, None)
                else: self.valu_sw[r] = p
        if mn.startswith("s_") and ops and "m0" in R[0] and not mn.startswith("s_cmp"): self.salu_m0 = p
        if isvm and "_store" in mn and ("x4" in mn or "x3" in mn):
            data = R[0] if mn.startswith("buffer") else R[1]
            for r in data: self.store_data[r] = p
        if isvm:
            self.vm_n += 1
            if tag is not None: self.tags[tag] = ("vm", self.vm_n)
        if isds:
            self.lg_n += 1
            if tag is not None: self.tags[tag] = ("lg", self.lg_n)
    def need(self, *tags):
        vm = lg = None
        for t in tags:
            k, n = self.tags[t]
            if k == "vm" and n > self.vm_done: vm = max(vm or 0, n)
            if k == "lg" and n > self.lg_done: lg = max(lg or 0, n)
        parts = []
        if vm is not None:
            c = min(63, self.vm_n - vm); parts.append(f"vmcnt({c})"); self.vm_done = self.vm_n - c
        if lg is not None:
            c = min(15, self.lg_n - lg); parts.append(f"lgkmcnt({c})"); self.lg_done = self.lg_n - c
        if parts: self.ins("s_waitcnt " + " ".join(parts))
    def drain(self, vm=True, lg=True):
        parts = []
        if vm: parts.append("vmcnt(0)"); self.vm_done = self.vm_n
        if lg: parts.append("lgkmcnt(0)"); self.lg_done = self.lg_n
        self.ins("s_waitcnt " + " ".join(parts))
    def text(self): return "\n".join(self.lines) + "\n"
```

```python
import sys, struct
from collections import deque
from asmlib import HEADER, KN, descriptor, file_text
from emit import Emit

SS = 1040; WREG = 16 * SS; BUF = 64 * SS; U_BASE = 2 * BUF; R_BASE = U_BASE + 12 * 1024; W2_LDS = U_BASE + 28 * 1024
MP_LDS = W2_LDS + 256; PP_LDS = MP_LDS + 1024; LDS_SIZE = PP_LDS + 256
WSTRIDE = 205824; WS_U = 4 * WSTRIDE; WS_TAG = WS_U + 24 * 1024; WS_SIZE = WS_TAG + 16 * 128
NPROD_W = 50; NPROD = 56
STAMP_OFF = 128 << 20
def f2u(x): return struct.unpack("<I", struct.pack("<f", x))[0]
LOG2E = 1.4426950408889634
C1 = 2 * 0.7978845608028654
K1 = -C1 * LOG2E; K2 = -C1 * 0.044715 * LOG2E

def q4(p, b): return f"{p}[{b}:{b+3}]"
def E(s, q): return q4("a", (q * 16 + s) * 4) if q < 4 else q4("v", 192 + 4 * s)
def T5(s): return q4("v", (12, 32)[s & 1])
def frag(s, q): return E(s, q) if q < 5 else T5(s)
def Rq(g): return q4("v", 48 + 4 * g)
def Dq(n): return 36 + 4 * (n % 3)
NU = 6
def Uq(T): return 64 + 4 * (T % NU)
def U1(p): return 88 + (p & 3)
URR = 12
def Aq(f, h, t): return 96 + 16 * (f & 1) + 8 * h + 4 * t
def Wq(j): return 128 + 4 * (j % 8)
ACC = 160
def PACC(s): return 16 + s
def IREG(p, m):
    if p < 4: return 192 + 4 * m + p
    return (252 if p == 4 else 92) + m
IR = 32
def Tidx(q, p): return p * (p + 1) // 2 + q
def X(j): return (-(j >> 2)) & 3
vCOFF, vWOFF, vA0, vA1, vH, vP0, vP1, vU, vS = 1, 4, 5, 6, 7, 8, 9, 10, 11
vPOLL, vPADR, vB2, vCNT, vPF = 112, 120, 121, 122, 123
sW, sW1K, sIDX, sWOFF, sWREG, sT, sSEL, sB2, sWOFF2, sPG, sNOW, sBASE, sUO = 40, 41, 42, 43, 44, 45, 58, 59, 62, 63, 66, 67, 73

def srd(e, d, b, nbytes):
    e(f"s_mov_b32 s{d}, s{b}\ns_and_b32 s{d+1}, s{b+1}, 0xffff\ns_mov_b32 s{d+2}, {nbytes}\ns_mov_b32 s{d+3}, 0x00020000")

def prod_issue_w(e):
    srd(e, 36, 10, 819200)
    e("v_lshrrev_b32 v96, 5, v0\nv_lshlrev_b32 v96, 11, v96\nv_and_b32 v97, 31, v0\nv_lshl_add_u32 v96, v97, 2, v96")
    e("s_lshl_b32 s48, s47, 13\ns_lshl_b32 s49, s46, 7\ns_add_u32 s48, s48, s49")
    for k in range(2):
        for x in range(8):
            e(f"buffer_load_dword v{128+8*k+x}, v96, s[36:39], s48 offen offset:{256*x}", tag=("raw", k))
        if k < 1: e("s_add_u32 s48, s48, 4096")
def prod_finish_w(e):
    e(f"s_mul_i32 s48, s46, {2*WSTRIDE}\ns_lshl_b32 s49, s47, 11\ns_add_u32 s48, s48, s49\ns_add_u32 s49, s48, {WSTRIDE}\nv_lshlrev_b32 v97, 4, v0")
    e("s_mov_b32 s50, 0x05040100\ns_mov_b32 s51, 0x07060302")
    for k in range(2):
        e.need(("raw", k))
        for x in range(2):
            for y in range(4):
                e(f"v_perm_b32 v{100+8*k+4*x+y}, v{128+8*k+2*y+1}, v{128+8*k+2*y}, s{50+x}")
            e(f"buffer_store_dwordx4 {q4('v',100+8*k+4*x)}, v97, s[32:35], s{48+x} offen offset:{1024*k} sc0 sc1", tag="st")
def prod_u(e):
    srd(e, 36, 8, 20000)
    e("v_and_b32 v94, 15, v0\nv_lshrrev_b32 v95, 4, v0")
    e("s_cmp_ge_u32 s48, 3\ns_cbranch_scc1 L_um\ns_cmp_ge_u32 s48, 1\ns_cbranch_scc1 L_u1")
    e(f"v_lshrrev_b32 v96, 2, v94\nv_mul_u32_u24 v98, 200, v95\nv_lshl_add_u32 v98, v96, 1, v98\nv_add_u32 v98, {2 * (96 * 100 + 96)}, v98\nbuffer_load_ushort v128, v98, s[36:39], 0 offen")
    e("v_and_b32 v96, 3, v0\ns_waitcnt vmcnt(0)\nv_lshlrev_b32 v128, 16, v128")
    for t in range(4): e(f"v_cmp_eq_u32 vcc, {t}, v96\nv_cndmask_b32 v{100+t}, 0, v128, vcc")
    e("s_branch L_ust")
    e.label("L_u1")
    e("s_sub_u32 s46, s48, 1\ns_lshl_b32 s46, s46, 6     ; 16 * first q")
    e(f"v_add_u32 v96, s46, v94\nv_mul_u32_u24 v98, 200, v95\nv_lshl_add_u32 v98, v96, 1, v98\nv_add_u32 v98, {2*96*100}, v98")
    e(f"v_mul_u32_u24 v99, 200, v96\nv_lshl_add_u32 v99, v95, 1, v99\nv_add_u32 v99, {2*96}, v99\nv_add_u32 v97, 6400, v99")
    for k in range(4): e(f"buffer_load_ushort v{128+k}, v98, s[36:39], 0 offen offset:{32*k}")
    for k in range(4): e(f"buffer_load_ushort v{132+k}, v{99 if k < 2 else 97}, s[36:39], 0 offen offset:{3200*(k&1)}")
    e("s_waitcnt vmcnt(0)")
    for k in range(8): e(f"v_lshlrev_b32 v{128+k}, 16, v{128+k}")
    for k in range(4): e(f"v_add_f32 v{100+k}, v{128+k}, v{132+k}")
    e("s_branch L_ust")
    e.label("L_um")
    e("s_sub_u32 s46, s48, 3\ns_mov_b32 s47, 0")
    for k in range(5):
        e("s_cmp_gt_u32 s46, s47\ns_cselect_b32 s49, 1, 0\ns_add_u32 s47, s47, s49\ns_mul_i32 s49, s49, s47\ns_sub_u32 s46, s46, s49")
    e("s_lshl_b32 s49, s47, 4\nv_add_u32 v96, s49, v94         ; column j")
    e("s_lshl_b32 s49, s46, 4\nv_lshl_add_u32 v97, v95, 2, s49")
    e("v_mul_u32_u24 v98, 200, v97\nv_lshl_add_u32 v98, v96, 1, v98")
    e("v_mul_u32_u24 v99, 200, v96\nv_lshl_add_u32 v99, v97, 1, v99")
    e("s_cmp_eq_u32 s46, s47\ns_cselect_b32 s49, 0x100000, 0\nv_add_u32 v99, s49, v99   ; diagonal tile: no transposed part")
    for r in range(4): e(f"buffer_load_ushort v{128+r}, v98, s[36:39], 0 offen offset:{200*r}")
    e("buffer_load_dwordx2 v[132:133], v99, s[36:39], 0 offen")
    e("s_waitcnt vmcnt(0)")
    for r in range(4): e(f"v_lshlrev_b32 v{128+r}, 16, v{128+r}")
    e("v_lshlrev_b32 v134, 16, v132\nv_and_b32 v135, 0xffff0000, v132\nv_lshlrev_b32 v136, 16, v133\nv_and_b32 v137, 0xffff0000, v133")
    for r in range(4): e(f"v_add_f32 v{100+r}, v{128+r}, v{134+r}")
    e.label("L_ust")
    e(f"s_lshl_b32 s48, s48, 10\ns_add_u32 s48, s48, {WS_U}\nv_lshlrev_b32 v97, 4, v0")
    e("buffer_store_dwordx4 v[100:103], v97, s[32:35], s48 offen sc0 sc1")

def stamp(e, cfg, k):
    if cfg["stamps"]: e(f"{'s_memtime' if cfg['stamps']==2 else 's_memrealtime'} s[{80+2*k}:{81+2*k}]")

def gen_main(cfg):
    e = Emit()
    sst = cfg.get("sst", []); poll = cfg["poll"]; npre = cfg["npre"]; g1pre = cfg["g1pre"]; TSH = 2
    assert 1 <= poll <= 16 and npre <= g1pre
    e.label("L_start")
    e("s_cmp_ge_u32 s2, 256\ns_cbranch_scc1 L_end")
    e("s_load_dwordx16 s[4:19], s[0:1], 0\ns_load_dwordx4 s[20:23], s[0:1], 64")
    e("s_memrealtime s[64:65]")
    stamp(e, cfg, 0)
    e(f"v_lshrrev_b32 v9, 6, v0\nv_and_b32 v0, 63, v0\nv_readfirstlane_b32 s{sW}, v9\nv_lshlrev_b32 v{vWOFF}, 4, v0")
    e.protect("v0", f"v{vWOFF}", f"s{sW}", "s2", *[f"s{k}" for k in range(4, 24)])
    if cfg["codepf"]:
        e("s_getpc_b64 s[46:47]")
        e.label("L_pc")
        e("s_sub_u32 s46, s46, L_pc-L_start\ns_subb_u32 s47, s47, 0")
        e(f"s_lshr_b32 s48, s2, 3\ns_and_b32 s48, s48, 31\ns_lshl_b32 s48, s48, 10\ns_lshl_b32 s49, s{sW}, 8\ns_add_u32 s48, s48, s49\ns_sub_u32 s48, s48, 1280")
        e(f"s_lshl_b32 s49, s{sW}, 9\nv_lshl_add_u32 v2, v0, 7, s49\nv_lshl_add_u32 v3, v0, 7, s48\ns_mul_i32 s49, s{sW}, 768\ns_add_u32 s49, s49, L_prod-L_start-512\nv_lshl_add_u32 v5, v0, 7, s49")
        e("v_cmp_gt_u32 vcc, 4, v0\nv_cndmask_b32 v5, v5, v2, vcc\nv_cmp_gt_u32 vcc, 10, v0\nv_cndmask_b32 v5, v3, v5, vcc\nv_min_u32 v5, L_codeend-L_start-4, v5")
        e(f"s_mov_b64 exec, 0xfff\nglobal_load_dword v{vPF}, v5, s[46:47]\ns_mov_b64 exec, -1")
    e(f"s_mul_i32 s{sWREG}, s{sW}, {WREG}\ns_lshl_b32 s{sIDX}, s2, 6\ns_lshl_b32 s{sT}, s{sW}, 4\ns_add_u32 s{sIDX}, s{sIDX}, s{sT}\ns_mul_i32 s{sIDX}, s{sIDX}, 400")
    e(f"s_add_u32 m0, s{sWREG}, {BUF}\ns_mov_b32 s26, 6553600\ns_mov_b32 s27, 0x00020000\ns_add_u32 s{sT}, s{sIDX}, 4096")
    e.protect(f"s{sWREG}", f"s{sIDX}", "s26", "s27")
    if cfg["pmap"]: e(f"s_lshr_b32 s{sPG}, s2, 3\ns_lshl_b32 s{sPG}, s{sPG}, 2\ns_and_b32 s46, s2, 3\ns_or_b32 s{sPG}, s{sPG}, s46\ns_and_b32 s46, s2, 4\ns_lshl_b32 s46, s46, 6\ns_or_b32 s{sPG}, s{sPG}, s46")
    else: e(f"s_mov_b32 s{sPG}, s2")
    e(f"s_cmp_lt_u32 s{sPG}, {NPROD}")
    e("s_waitcnt lgkmcnt(0)")
    e("s_cbranch_scc1 L_prod")
    def idx_dma(setup):
        if setup: e(f"s_add_u32 m0, s{sWREG}, {BUF}\ns_add_u32 s{sT}, s{sIDX}, 4096")
        e("s_mov_b32 s24, s4\ns_and_b32 s25, s5, 0xffff")
        for k in range(7):
            if k == 4: e("s_add_u32 m0, m0, 4096")
            if k == 6: e("s_mov_b64 exec, 0xffff")
            e(f"buffer_load_dwordx4 v{vWOFF}, s[24:27], s{sIDX if k < 4 else sT} offen offset:{1024*(k%4)} nt lds", tag="idx")
        e("s_mov_b64 exec, -1")
    shifted = set(); gcount = [0]
    def Ird(p):
        for m in range(4): e(f"ds_read_b32 v{IREG(p,m)}, v5 offset:{1600*m+64*p}", tag=("I", p, m))
    def shift_idx(p, m):
        if (p, m) in shifted: return
        shifted.add((p, m)); e.need(("I", p, m))
        r = IR if p == "R" else IREG(p, m)
        e(f"v_lshlrev_b32 v{r}, 6, v{r}")
    def G(p, s):
        t = 2 + (gcount[0] & 1); gcount[0] += 1
        if p == "R":
            shift_idx("R", 0); r = IR; j = s
            e(f"s_add_u32 m0, s74, {s*1024}")
        else:
            shift_idx(p, s >> 2); r = IREG(p, s >> 2); j = s & 3
            e(f"s_add_u32 m0, s{sWREG}, {(p&1)*BUF + s*SS}")
        e(f"v_add_u32_dpp v{t}, v{r}, v{vCOFF} quad_perm:[{j},{j},{j},{j}] row_mask:0xf bank_mask:0xf")
        e(f"buffer_load_dwordx4 v{t}, s[28:31], 0 offen lds", tag=("G", p, s))
    def Wtxt(j): return f"buffer_load_dwordx4 {q4('v', Wq(j))}, v{vWOFF}, s[32:35], s{(sWOFF, sWOFF2)[(j>>2)&1]} offen offset:{(j%4)*1024} sc1"
    def Winc(j):
        r = (sWOFF, sWOFF2)[(j >> 2) & 1]
        return f"s_sub_u32 s{r}, s{r}, {192*1024}" if j < 8 else f"s_add_u32 s{r}, s{r}, 8192"
    def W(j):
        e(Wtxt(j), tag=("W", j))
        if j % 4 == 3: e(Winc(j))
    def Utxt(k): return [f"s_add_u32 m0, s{sW1K}, {U_BASE + 4096*k}", f"buffer_load_dwordx4 v{vWOFF}, s[32:35], s{sUO} offen sc1 lds", f"s_add_u32 s{sUO}, s{sUO}, 4096"]
    polltxt = f"buffer_load_dword v{vPOLL}, v{vPADR}, s[32:35], 0 offen sc1"
    keep = [f"v{vCOFF}", f"v{vPADR}"] + [f"s{k}" for k in list(range(24, 26)) + list(range(28, 36)) + list(range(68, 72))]
    def opening(x):
        shifted.clear(); gcount[0] = 0
        srd(e, 28, 6, 6400000)
        e("v_and_b32 v2, 3, v0\nv_lshrrev_b32 v3, 4, v0")
        e(f"v_sub_u32 v{vCOFF}, 0, v3\nv_and_b32 v{vCOFF}, 3, v{vCOFF}\nv_xor_b32 v{vCOFF}, v{vCOFF}, v2\nv_lshlrev_b32 v{vCOFF}, 4, v{vCOFF}")
        e(f"v_mul_u32_u24 v5, 400, v2\nv_lshrrev_b32 v6, 2, v0\nv_lshl_add_u32 v5, v6, 2, v5\ns_add_u32 s{sT}, s{sWREG}, {BUF}\nv_add_u32 v5, s{sT}, v5")
        e(f"v_mul_u32_u24 v7, 1600, v2\nv_and_b32 v6, 3, v6\nv_mul_u32_u24 v6, 400, v6\nv_add_u32 v7, v7, v6\nv_lshl_add_u32 v7, v3, 2, v7\nv_add_u32 v7, s{sT}, v7")
        e(f"s_lshl_b32 s74, s{sW}, 12\ns_add_u32 s74, s74, {R_BASE}")
        if not x: e.need("idx")
        e(f"ds_read_b32 v{IR}, v7 offset:384", tag=("I", "R", 0))
        Ird(0); Ird(1); Ird(2)
        if not sst: stamp(e, cfg, 1)
        for g in range(4): G("R", g)
        for s in range(16):
            G(0, s)
            if s == 0:
                if not x: srd(e, 32, 22, WS_SIZE); srd(e, 68, 20, 256)
                e(f"s_lshr_b64 s[64:65], s[64:65], 9\ns_mov_b32 s{sNOW}, s64")
                e(f"v_min_u32 v{vPADR}, {NPROD-1}, v0\nv_lshrrev_b32 v6, {TSH}, v{vPADR}\nv_and_b32 v{vPADR}, {(1<<TSH)-1}, v{vPADR}\nv_lshlrev_b32 v{vPADR}, 2, v{vPADR}\nv_lshl_add_u32 v{vPADR}, v6, 7, v{vPADR}\nv_add_u32 v{vPADR}, {WS_TAG}, v{vPADR}")
                e.protect("v5", *keep)
                e.need(("I", 2, 3)); Ird(3); Ird(4); Ird(5)
            if s + 1 == poll:
                e(f"s_cmp_lg_u32 s{sW}, 0\ns_cbranch_scc1 L_np{x}")
                e.uncounted(polltxt)
                e.label(f"L_np{x}")
        e(f"s_lshl_b32 s{sW1K}, s{sW}, 10\ns_mul_i32 s{sWOFF}, s{sW}, {WSTRIDE}\ns_add_u32 s{sWOFF}, s{sWOFF}, {192*1024}\ns_add_u32 s{sWOFF2}, s{sWOFF}, 4096\ns_add_u32 s{sUO}, s{sW1K}, {WS_U}")
        e(f"v_lshrrev_b32 v2, 5, v0\nv_lshlrev_b32 v{vH}, 4, v2\ns_lshr_b32 s{sT}, s{sW}, 1\ns_lshl_b32 s{sT}, s{sT}, 7")
        srd(e, 36, 12, 256)
        for i in range(4): e(f"buffer_load_dwordx4 {q4('v', 96+4*i)}, v{vH}, s[36:39], s{sT} offen offset:{32*i}", tag="b1")
        srd(e, 36, 16, 2)
        e(f"buffer_load_ushort v{vB2}, off, s[36:39], 0", tag="b2")
        srd(e, 36, 14, 256)
        e(f"s_mov_b32 m0, {W2_LDS}\nv_lshlrev_b32 v2, 2, v0\nbuffer_load_dword v2, s[36:39], 0 offen lds", tag="w2")
        if x: e("s_branch L_join")
    idx_dma(False)
    opening("")
    e.label("L_join")
    e("s_nop 1")
    e.protect(f"v{vH}", f"s{sW1K}", f"v{vB2}", f"v{vPF}", f"v{vPOLL}", *[f"v{96+k}" for k in range(16)])
    e("v_lshrrev_b32 v3, 4, v0")
    e(f"v_bfe_u32 v2, v0, 2, 2\nv_sub_u32 v6, 0, v2\nv_and_b32 v6, 3, v6\nv_xor_b32 v6, v6, v3\nv_and_b32 v{vP0}, 15, v0\nv_lshlrev_b32 v{vP0}, 6, v{vP0}\nv_lshl_add_u32 v{vP0}, v6, 4, v{vP0}")
    e(f"v_add_u32 v33, s74, v{vP0}")
    e(f"v_add_u32 v{vP0}, s{sWREG}, v{vP0}\nv_add_u32 v{vP1}, {BUF}, v{vP0}")
    e(f"v_bfe_u32 v{vS}, v0, 2, 3\nv_lshlrev_b32 v{vS}, 10, v{vS}\nv_and_b32 v2, 3, v0\nv_lshl_add_u32 v{vS}, v2, 6, v{vS}\nv_add_u32 v{vS}, {R_BASE}, v{vS}")
    e(f"v_add_u32 v{vU}, {U_BASE}, v{vWOFF}")
    e.protect(f"v{vP0}", f"v{vP1}", f"v{vU}", "v33")
    for s in range(16): e(f"v_mov_b32 v{PACC(s)}, 0")
    for p in range(1, 6):
        for m in range(4): shift_idx(p, m)
    for s in range(npre): G(1, s)
    e.need(("G", "R", 3))
    e(f"s_cmp_lg_u32 s{sW}, 0\ns_cbranch_scc1 L_ready")
    e.release(f"v{vPOLL}")
    def tagcheck(span):
        e(f"v_subrev_u32 v{vPOLL}, s{sBASE}, v{vPOLL}\nv_cmp_lt_u32 vcc, {span}, v{vPOLL}\ns_nop 0\ns_cbranch_vccz L_ready")
    e(f"s_sub_u32 s{sBASE}, s{sNOW}, 2")
    e(f"s_waitcnt vmcnt({16 - poll + 6 + npre})")
    tagcheck(4)
    e(f"s_mov_b32 s{sT}, 0")
    e.label("L_spin")
    e.uncounted(polltxt)
    e.uncounted(f"buffer_load_dword v{vCNT}, off, s[68:71], 0 sc1")
    e(f"s_memrealtime s[64:65]\ns_add_u32 s{sT}, s{sT}, 1\ns_waitcnt vmcnt(0) lgkmcnt(0)\nv_cmp_le_u32 vcc, {NPROD}, v{vCNT}\ns_lshr_b64 s[64:65], s[64:65], 9\ns_cbranch_vccnz L_ready")
    e(f"s_sub_u32 s72, s64, s{sBASE}\ns_add_u32 s72, s72, 1")
    tagcheck("s72")
    e(f"s_sleep 8\ns_cmp_lt_u32 s{sT}, 0x20000\ns_cbranch_scc1 L_spin")
    e.label("L_ready")
    e("s_barrier")
    if not sst: stamp(e, cfg, 2)
    for j in range(4): W(j)
    for k in range(3):
        a, b, c = Utxt(k); e(a); e(b, tag="U1"); e(c)
    for j in range(4, 8): W(j)
    for g in range(4): e(f"ds_read_b128 {Rq(g)}, v33 offset:{g*1024}", tag=("R", g))
    for s in range(npre, g1pre): G(1, s)
    e.need("b1", "b2", "w2")
    e.release(f"v{vB2}", f"v{vPF}", f"v{vPADR}", "v5", "v33")
    e(f"s_and_b32 s{sT}, s{sW}, 1\ns_mul_i32 s{sT}, s{sT}, 0x02020000\ns_add_u32 s{sSEL}, s{sT}, 0x01000c0c\nv_lshlrev_b32 v{vB2}, 16, v{vB2}")
    for r in range(16):
        e(f"v_perm_b32 v{ACC+r}, v{96+r}, v{96+r}, s{sSEL}\nv_mov_b32 v{ACC+16+r}, v{ACC+r}")
    e(f"v_readfirstlane_b32 s{sB2}, v{vB2}")
    e.release(*[f"v{96+k}" for k in range(16)])
    e.protect(f"s{sSEL}", f"s{sB2}", *[f"v{48+k}" for k in range(16)])
    if cfg["stamps"] and -2 in cfg["stamp_stages"]: stamp(e, cfg, 3 + cfg["stamp_stages"].index(-2))

    stage_of = lambda f: -1 if f < 4 else (f - 4) // 16
    last_of = {p: 4 + 16 * p + 15 for p in range(-1, 5)}; last_of[-1] = 3
    bar_at = {f: p for p, f in last_of.items()}
    scal, mem, valu, fm, gq = deque(), deque(), deque(), deque(), deque()
    slot = [0]; tile_n = [0]; nextU = [0]; deadU = set(); gstate = [None]; barriers_done = set()
    def Axad(f):
        if f < 4: x = X(4 * f)
        else:
            j = (f - 4) % 16
            if j % 4: return []
            x = X(j)
        return [f"v_xad_u32 v{vA0}, v{vH}, {x<<4}, v{vS}", f"v_xad_u32 v{vA1}, v{vH}, {(x^2)<<4}, v{vS}"]
    def Ard(f):
        off = (lambda t: t * 8192 + f * 256) if f < 4 else (lambda t: t * 32 * SS + ((f - 4) % 16) * 64)
        return [(f"ds_read_b128 {q4('v', Aq(f,h,t))}, v{vA0+h} offset:{off(t)}", ("A", f, h, t)) for h in range(2) for t in range(2)]
    def Prd(p, s): return [(f"ds_read_b128 {frag(s,p)}, v{vP0 + (p&1)} offset:{s*SS}", ("P", p, s))]
    def pump_U():
        while nextU[0] < 21 and (nextU[0] < NU or (nextU[0] - NU) in deadU) and (-1 in barriers_done) and (nextU[0] < 9 or 1 in barriers_done):
            T = nextU[0]; mem.append((f"ds_read_b128 {q4('v', Uq(T))}, v{vU} offset:{(3+T)*1024}", ("U", T))); nextU[0] += 1
    def pump_G():
        if gstate[0] is None and gq:
            p, s = gq.popleft()
            if p == "U":
                a, b, c = Utxt(s)
                st = dict(left=1, load=(b, ("U2", s)), after=c)
                scal.append((a, lambda: mark(st), slot[0]))
            else:
                t = 2 + (gcount[0] & 1); gcount[0] += 1; j = s & 3
                st = dict(left=2, load=(f"buffer_load_dwordx4 v{t}, s[28:31], 0 offen lds", ("G", p, s)), after=None)
                scal.append((f"s_add_u32 m0, s{sWREG}, {(p&1)*BUF + s*SS}", lambda: mark(st), slot[0]))
                valu.append((f"v_add_u32_dpp v{t}, v{IREG(p, s>>2)}, v{vCOFF} quad_perm:[{j},{j},{j},{j}] row_mask:0xf bank_mask:0xf", lambda: mark(st)))
            gstate[0] = st
    def mark(st):
        st["left"] -= 1
        if st["left"] == 0: st["ready_slot"] = slot[0] + 1
    def emit_scal(upto=1 << 30):
        for it in scal:
            if it[2] <= upto:
                scal.remove(it); e(it[0])
                if it[1]: it[1]()
                return True
        return False
    def emit_valu():
        it = valu.popleft()
        if isinstance(it, str): e(it)
        else:
            e(it[0]); it[1]()
    def emit_mem():
        it = mem.popleft()
        e(it[0], tag=it[1])
        return 0.8 if it[0].startswith("ds_") else 0.3
    def emit_gload():
        st = gstate[0]
        if st is not None and st["left"] == 0 and st["ready_slot"] <= slot[0]:
            e(st["load"][0], tag=st["load"][1])
            if st["after"]: e(st["after"])
            gstate[0] = None; pump_G(); return 0.75
        return 0
    def force_G(tag):
        while tag not in e.tags:
            assert gstate[0] is not None, tag
            st = gstate[0]
            while st["left"]:
                if scal: emit_scal()
                if st["left"] and valu: emit_valu()
            st["ready_slot"] = slot[0]; emit_gload()
    def ensure(tg):
        for t in tg:
            if t[0] in ("G", "U2"): force_G(t)
            while t not in e.tags: emit_mem()
    def fm_ready(): return fm and (e.pos - fm[0]["pos"] - 1) >= 8
    def emit_fm():
        t = fm[0]; acc, d, u = t["ops"].pop(0)
        if t["need"]: ensure([t["need"]]); e.need(t["need"]); t["need"] = None
        if not cfg.get("nofma"): e(f"v_fmac_f32 v{acc}, v{d}, v{u}")
        if not t["ops"]:
            fm.popleft()
            if t["done"]: t["done"]()
    def flush_fm(upto):
        while fm and fm[0]["n"] <= upto:
            if not fm_ready() and valu: emit_valu()
            else: emit_fm()
    extra = deque()
    red = []
    P = PACC
    for s in range(8): red += [f"v_permlane32_swap_b32 v{P(s)}, v{P(s+8)}"]
    for s in range(8): red += [f"v_add_f32 v{P(s)}, v{P(s)}, v{P(s+8)}"]
    for s in range(4): red += [f"v_permlane16_swap_b32 v{P(s)}, v{P(s+4)}"]
    for s in range(4): red += [f"v_add_f32 v{P(s)}, v{P(s)}, v{P(s+4)}"]
    for s in range(2): red += [f"v_add_f32_dpp v{P(s+4)}, v{P(s)}, v{P(s)} row_ror:8 row_mask:0xf bank_mask:0xf"]
    for s in range(2): red += [f"v_add_f32_dpp v{P(s+4)}, v{P(s+2)}, v{P(s+2)} row_ror:8 row_mask:0xf bank_mask:0xc"]
    red += [f"v_add_f32_dpp v{P(0)}, v{P(4)}, v{P(4)} row_half_mirror row_mask:0xf bank_mask:0xf"]
    red += [f"v_and_b32 v3, 60, v0", f"v_add_f32_dpp v{P(0)}, v{P(5)}, v{P(5)} row_half_mirror row_mask:0xf bank_mask:0xa"]
    red += [f"s_lshl_b32 s{sT}, s{sW}, 6", f"s_add_u32 s{sT}, s{sT}, {PP_LDS}"]
    red += [f"v_add_f32_dpp v{P(0)}, v{P(0)}, v{P(0)} quad_perm:[1,0,3,2] row_mask:0xf bank_mask:0xf", f"v_add_u32 v3, s{sT}, v3"]
    red += [f"s_lshr_b32 s{sT}, s{sW}, 1", f"v_add_f32_dpp v{P(0)}, v{P(0)}, v{P(0)} quad_perm:[2,3,0,1] row_mask:0xf bank_mask:0xf"]
    W2R = 64
    red += [f"s_lshl_b32 s{sT}, s{sT}, 7", f"s_add_u32 s{sT}, s{sT}, {W2_LDS}", f"v_add_u32 v2, s{sT}, v{vH}"]
    red += [f"ds_write_b32 v3, v{P(0)}"]
    red += [f"ds_read_b128 {q4('v', W2R+4*i)}, v2 offset:{32*i}" for i in range(4)]
    red += [f"s_mov_b32 s60, {hex(f2u(K2))}", f"s_mov_b32 s61, {hex(f2u(K2))}", f"v_mov_b32 v36, {hex(f2u(K1))}", f"v_mov_b32 v37, {hex(f2u(K1))}", "v_mov_b32 v38, 1.0", "v_mov_b32 v39, 1.0"]
    red += [f"s_mov_b32 s36, s18", "s_and_b32 s37, s19, 0xffff", "s_mov_b32 s38, 32768", "s_mov_b32 s39, 0x00020000"]

    LAG = cfg["plag"]; GEND = cfg["gend"]
    units = [(4 + cfg["p0off"] + s * (15 - cfg["p0off"]) / 16.0, 0, s) for s in range(16)]
    PEND = cfg["pend"] if isinstance(cfg["pend"], (list, tuple)) else [cfg["pend"]] * 5
    tprev = 0
    for p in range(1, 6):
        t0 = max(4 + 16 * (p - 1) + LAG, tprev); t1 = 4 + 16 * p + PEND[p - 1]
        units += [(t0 + s * (t1 - t0) / 16.0, p, s) for s in range(16)]; tprev = t1
    units.sort()
    ops = []
    for f in range(100):
        for k in range(4): ops.append(dict(t=f + k / 4.0 - 1e-4, kind="M", f=f, h=k >> 1, tt=k & 1))
    ntiles = 0
    for u, (t0, p, s) in enumerate(units):
        tl = [("N", k) for k in range(p + 1)] + [("R", p)] + ([("RR", s >> 2)] if p == 0 and s % 4 == 0 else [])
        t1 = units[u + 1][0] if u + 1 < len(units) else t0 + 1
        for k, x in enumerate(tl): ops.append(dict(t=t0 + (k + 0.5) * (t1 - t0) / len(tl), kind="P", u=u, first=(k == 0), tile=x, p=p, s=s))
        ntiles += len(tl)
    ops.sort(key=lambda o: o["t"])
    gt = []
    for p in range(1, 6):
        for s in range(16):
            if p == 1 and s < g1pre: continue
            ge = GEND[p - 1] if isinstance(GEND, (list, tuple)) else GEND
            t = 4 + 16 * (p - 1) - 1 + s * (16 - ge) / 15.0
            if p == 1: t = (s - g1pre) * (19 - ge) / max(1.0, 15.0 - g1pre)
            gt.append((t, p, s))
    for k in range(3, 6): gt.append((19 + 2.1 + 3 * (k - 3), "U", k))
    gt = deque(sorted(gt, key=lambda x: x[0]))
    for o in ops:
        if o["kind"] == "M":
            f, h = o["f"], o["h"]
            o["needs"] = [("A", f, h, 1), ("W", 2 * f + h)] if o["tt"] == 0 else []
        else:
            o["needs"] = [("P", o["p"], o["s"])] if o["first"] else []
            if o["tile"][0] in ("R", "RR"): o["needs"] = o["needs"] + [("R", o["s"] >> 2)]
    for x in Axad(0): e(x)
    mem.extend(Ard(0))
    while mem: emit_mem()
    for x in Axad(1): e(x)
    red_queued = False
    def released(g):
        if g[1] == "U": return 0 in barriers_done
        return g[1] < 2 or (g[1] - 2) in barriers_done
    for k, o in enumerate(ops):
        slot[0] = k
        ensure(o["needs"]); e.need(*o["needs"])
        gate = []
        if o["kind"] == "M":
            f, h, tt = o["f"], o["h"], o["tt"]
            if h == 0 and tt == 0 and f in sst: stamp(e, cfg, 1 + sst.index(f))
            c = f"v[{ACC+16*tt}:{ACC+16*tt+15}]"
            if not cfg.get("nom"): e(f"v_mfma_f32_32x32x16_bf16 {c}, {q4('v', Wq(2*f+h))}, {q4('v', Aq(f,h,tt))}, {c}")
            j = 2 * f + h + 8
            if tt == 1 and j < 200:
                if j % 4 == 0:
                    for it in [x for x in scal if x[0] == Winc(j)]: scal.remove(it); e(it[0])
                mem.appendleft((Wtxt(j), ("W", j)))
                if j % 4 == 3: scal.append((Winc(j), None, k + 1))
            if h == 0 and tt == 0 and f < 99:
                while any(isinstance(x, str) for x in valu): emit_valu()
                assert f not in bar_at or bar_at[f] in barriers_done
                mem.extend(Ard(f + 1))
            if h == 1 and tt == 0 and f < 98:
                while any(m[1] and m[1][0] == "A" for m in mem): emit_mem()
                if f + 2 == 4: valu.extend([f"v_and_b32 v{vS}, 31, v0", f"v_mul_u32_u24 v{vS}, {SS}, v{vS}"])
                elif f + 2 > 4 and (f + 2 - 4) % 16 == 0: valu.append(f"{'v_add_u32' if stage_of(f) % 2 == 0 else 'v_subrev_u32'} v{vS}, {BUF}, v{vS}")
                valu.extend(Axad(f + 2))
            budget = 6
        else:
            n = tile_n[0]; flush_fm(n - 3)
            q, s = o["p"], o["s"]; kind, x = o["tile"]; D = Dq(n)
            if kind == "N":
                T = Tidx(x, q); A, B = frag(s, x), frag(s, q)
                item = dict(ops=[(PACC(s), D + r, Uq(T) + r) for r in range(4)], need=("U", T), done=((lambda T=T: (deadU.add(T), pump_U())) if s == 15 else None))
            elif kind == "R":
                A, B = Rq(s >> 2), frag(s, q)
                done = None
                if s == 15 and q < 2: done = (lambda q=q: mem.append((f"ds_read_b32 v{U1(q+4)}, v{vU} offset:{2*1024 + 4*q}", ("U1", q + 4))))
                item = dict(ops=[(PACC(s), D + (s & 3), U1(q))], need=("U1", q), done=done)
            else:
                A = B = Rq(x)
                item = dict(ops=[(PACC(4 * x + t), D + t, URR + t) for t in range(4)], need=("URR",), done=None)
            if not cfg.get("nop"): e(f"v_mfma_f32_16x16x32_bf16 {q4('v', D)}, {A}, {B}, 0")
            item.update(n=n, pos=e.pos - 1); fm.append(item); tile_n[0] += 1
            if o["first"] and o["u"] + 1 < len(units):
                _, q2, s2 = units[o["u"] + 1]
                gate = [("G", q2, s2)]; ensure(gate); mem.extend(Prd(q2, s2))
            budget = 2
        nxt = ops[k + 1] if k + 1 < len(ops) else None
        before = len(e.lines)
        bar = nxt and nxt["kind"] == "M" and nxt["h"] == 0 and nxt["tt"] == 0 and nxt["f"] in bar_at
        if bar:
            fb = nxt["f"]; pb = bar_at[fb]
            held = [m for m in mem if m[1] and m[1][0] == "P" and gate]
            for m in held: mem.remove(m)
            if gate: e.need(*gate)
            want = [("A", fb, h, t) for h in range(2) for t in range(2)] + [("G", pb + 1, 15)] + nxt["needs"]
            if pb >= 0: want += [("P", pb, s) for s in range(16)]
            if pb == 0: want += [("R", g) for g in range(4)]
            if pb == 1: want += [("U2", 5)]
            ensure(want); e.need(*want)
            if pb == -1: e.need("U1")
            e("s_barrier")
            barriers_done.add(pb)
            mem.extend(held)
            if pb == -1:
                mem.append((f"ds_read_b128 {q4('v', URR)}, v{vU} offset:0", ("URR",)))
                mem.append((f"ds_read_b128 {q4('v', U1(0))}, v{vU} offset:1024", ("U1", 0)))
                for q in range(1, 4): e.tags[("U1", q)] = None
                mem.extend(Prd(units[0][1], units[0][2]))
            pump_U()
            if cfg["stamps"] and pb in cfg["stamp_stages"]: stamp(e, cfg, 3 + cfg["stamp_stages"].index(pb))
        else:
            want = list(gate)
            if nxt and all(t in e.tags for t in nxt["needs"]): want += nxt["needs"]
            e.need(*want)
        if ("U1", 0) in e.tags and e.tags.get(("U1", 1), 0) is None:
            for q in range(1, 4): e.tags[("U1", q)] = e.tags[("U1", 0)]
        while gt and gt[0][0] <= o["t"] and released(gt[0]):
            _, gp, gs = gt.popleft(); gq.append((gp, gs))
        pump_G()
        if len(e.lines) == before: emit_scal(k)
        budget -= emit_gload()
        nm = 0
        while mem and nm < (4 if o["kind"] == "M" else 2): budget -= emit_mem(); nm += 1
        if not red_queued and tile_n[0] == ntiles and not fm:
            red_queued = True; extra.extend(red)
        while budget > 0.5:
            if valu: emit_valu()
            elif fm_ready(): emit_fm()
            elif emit_scal(k - 1): pass
            elif extra: e(extra.popleft())
            elif fm and tile_n[0] == ntiles: emit_fm()
            else: break
            budget -= 1
        if nxt and nxt["kind"] == "P": flush_fm(tile_n[0] - 3)
    assert not gt and not gq and gstate[0] is None and not scal and nextU[0] == 21
    while mem: emit_mem()
    while valu: emit_valu()
    flush_fm(1 << 30)
    if not red_queued: extra.extend(red)
    while extra: e(extra.popleft())
    stamp(e, cfg, 6)
    e.drain(vm=False)
    TA = [96, 98, 100, 102]; WF = [104, 106]; M = [12, 14]
    for r in range(0, 16, 2):
        wf = WF[(r >> 1) & 1]
        e(f"v_perm_b32 v{wf}, v{W2R+r}, v{W2R+r}, s{sSEL}\nv_perm_b32 v{wf+1}, v{W2R+r+1}, v{W2R+r+1}, s{sSEL}")
        x = [f"v[{ACC+16*t+r}:{ACC+16*t+r+1}]" for t in range(2)]
        tb = [TA[2 * ((r >> 1) & 1) + t] for t in range(2)]
        T = [f"v[{b}:{b+1}]" for b in tb]
        for t in range(2): e(f"v_pk_mul_f32 {T[t]}, {x[t]}, {x[t]}")
        for t in range(2): e(f"v_pk_fma_f32 {T[t]}, {T[t]}, s[60:61], v[36:37]")
        for t in range(2): e(f"v_pk_mul_f32 {T[t]}, {T[t]}, {x[t]}")
        for t in range(2): e(f"v_exp_f32 v{tb[t]}, v{tb[t]}\nv_exp_f32 v{tb[t]+1}, v{tb[t]+1}")
        for t in range(2): e(f"v_pk_mul_f32 {x[t]}, {x[t]}, v[{wf}:{wf+1}]")
        for t in range(2): e(f"v_pk_add_f32 {T[t]}, {T[t]}, v[38:39]")
        for t in range(2): e(f"v_rcp_f32 v{tb[t]}, v{tb[t]}\nv_rcp_f32 v{tb[t]+1}, v{tb[t]+1}")
        for t in (0, 1):
            m = f"v[{M[t]}:{M[t]+1}]"
            e(f"v_pk_mul_f32 {m}, {x[t]}, {T[t]}" if r == 0 else f"v_pk_fma_f32 {m}, {x[t]}, {T[t]}, {m}")
    e(f"v_lshlrev_b32 v2, 2, v0\ns_lshl_b32 s{sT}, s{sW}, 8\ns_add_u32 s{sT}, s{sT}, {MP_LDS}\nv_add_f32 v12, v12, v13\nv_add_f32 v14, v14, v15\nv_add_u32 v3, s{sT}, v2")
    e("v_permlane32_swap_b32 v12, v14\nv_add_f32 v12, v12, v14")
    e("ds_write_b32 v3, v12")
    e.drain(vm=False)
    e("s_barrier")
    e(f"s_cmp_lg_u32 s{sW}, 0\ns_cbranch_scc1 L_end")
    e(f"v_add_u32 v3, {MP_LDS}, v2")
    for k in range(5): e(f"ds_read_b32 v{12+k}, v3 offset:{256*k}")
    e(f"s_lshl_b32 s{sT}, s2, 7\nv_lshlrev_b32 v2, 1, v0")
    e.drain(vm=False)
    e(f"v_add_f32 v12, v12, v13\nv_add_f32 v14, v14, v15\nv_add_f32 v16, s{sB2}, v16\nv_add_f32 v12, v12, v14\nv_add_f32 v12, v12, v16")
    e("v_cvt_pk_bf16_f32 v12, v12, v12")
    e(f"buffer_store_short v12, v2, s[36:39], s{sT} offen")
    if cfg["stamps"]:
        stamp(e, cfg, 7)
        e("s_waitcnt lgkmcnt(0)\nv_cmp_eq_u32 vcc, 0, v0\ns_and_saveexec_b64 s[46:47], vcc")
        srd(e, 36, 22, STAMP_OFF + 256 * 64)
        e(f"s_lshl_b32 s{sT}, s2, 6\ns_add_u32 s{sT}, s{sT}, {STAMP_OFF}")
        for k in range(8):
            e(f"v_mov_b32 v2, s{80+2*k}\nv_mov_b32 v3, s{81+2*k}\nbuffer_store_dwordx2 v[2:3], off, s[36:39], s{sT} offset:{8*k}\ns_nop 1")
    e.label("L_end")
    e("s_endpgm")
    e.label("L_prod")
    e.vm_n = e.vm_done = e.lg_n = e.lg_done = 0
    e.release(*keep, f"v{vH}", f"s{sW1K}", f"v{vP0}", f"v{vP1}", f"v{vU}", f"s{sSEL}", f"s{sB2}", *[f"v{48+k}" for k in range(16)])
    e("s_nop 4")
    srd(e, 32, 22, WS_SIZE); srd(e, 68, 20, 256)
    e(f"s_cmp_ge_u32 s{sPG}, {NPROD_W}\ns_cbranch_scc1 L_produ")
    e(f"s_and_b32 s46, s{sW}, 1\ns_lshr_b32 s47, s{sW}, 1\ns_lshl_b32 s48, s{sPG}, 1\ns_add_u32 s47, s47, s48")
    prod_issue_w(e); prod_finish_w(e); e("s_branch L_prodst")
    e.label("L_produ")
    e(f"s_sub_u32 s48, s{sPG}, {NPROD_W}\ns_lshl_b32 s48, s48, 2\ns_add_u32 s48, s48, s{sW}")
    prod_u(e)
    e.label("L_prodst")
    idx_dma(True)
    e(f"s_waitcnt vmcnt(7)\ns_barrier\ns_cmp_lg_u32 s{sW}, 0\ns_cbranch_scc1 L_nosig")
    e(f"s_lshr_b32 s46, s{sPG}, {TSH}\ns_lshl_b32 s46, s46, 7\ns_and_b32 s47, s{sPG}, {(1<<TSH)-1}\ns_lshl_b32 s47, s47, 2\ns_add_u32 s46, s46, s47\ns_add_u32 s46, s46, {WS_TAG}")
    e("s_lshr_b64 s[48:49], s[64:65], 9\nv_mov_b32 v98, s48\nv_mov_b32 v97, 1\ns_mov_b64 exec, 1\nbuffer_store_dword v98, off, s[32:35], s46 sc0 sc1")
    e("buffer_atomic_add v97, off, s[68:71], 0 sc1\ns_mov_b64 exec, -1")
    e("s_waitcnt vmcnt(2)\ns_branch L_sigdone")
    e.label("L_nosig")
    e("s_waitcnt vmcnt(0)")
    e.label("L_sigdone")
    e.vm_n = e.vm_done = 0
    opening("p")
    e.label("L_codeend")
    return e

def kernel(name, e):
    return f".globl {name}\n.p2align 8\n.type {name},@function\n{name}:\n" + e.text()

NOTES = """;
; One workgroup = 64 samples on one CU (4 waves, 512 registers each).  Generated by a scheduling script; hand-designed.
;  * Embedding rows are gathered straight into LDS (buffer_load ... lds), 16 rows per instruction.  Fields 0..95 form 6 fragments of 16
;    (two LDS buffers hold the one in use and the next); fields 96..99 form block R, loaded first and kept packed 4 samples per operand.
;  * Pairwise branch: sum_ij w_p[i,j] <e_i,e_j> over the fragment pairs q <= p and the R pairs, one 16x16x32 MFMA per pair and
;    sample, weighted in f32 by U = w_p + w_p^T (w_p itself on the diagonal pairs).  Fragments 0-4 stay in registers.
;  * MLP: 32x32x16 MFMAs, wave w owns 32 hidden units for all 64 samples; accumulators start from b1; tanh-GELU and the w2 dot in f32.
;  * w1 (transposed into MFMA operand order) and U are built once per launch by 56 of the workgroups and handed over through d_ws:
;    write-through stores, s_waitcnt, barrier, then a tag word per producer (the 5.12 us tick of its start, so words left by an earlier
;    launch never match) and an arrival count in d_debug; readers check the tags (bounded re-poll also accepts the count) before loading.
""".rstrip().split("\n")

def build(**kw):
    cfg = dict(stamps=False, codepf=True, stamp_stages=[-1, 1, 4], poll=14, npre=0, g1pre=4, plag=4, pend=[4,4,4,4,0], p0off=1, gend=[4,4,4,4,5], pmap=True)
    cfg.update(kw)
    m = gen_main(cfg)
    sys.stderr.write(f"instructions {sum(m.counts.values())}, padded wait states {m.nops}, waits {m.counts.get('s_waitcnt')}\n")
    return file_text([f"; @launch grid=(256,1,1) block=(256,1,1) lds={LDS_SIZE}"] + NOTES, kernel(KN, m), [descriptor(KN, 512, 256)])
if __name__ == "__main__":
    out = sys.argv[1]; kw = eval("dict(" + (sys.argv[2] if len(sys.argv) > 2 else "") + ")")
    open(out, "w").write(build(**kw))
```

```python
import sys, struct
from collections import deque
from asmlib import HEADER, KN, descriptor, file_text
from emit import Emit

SS = 1040; WREG = 16 * SS; BUF = 64 * SS; U_BASE = 2 * BUF; R_BASE = U_BASE + 12 * 1024; W2_LDS = U_BASE + 28 * 1024
MP_LDS = W2_LDS + 256; PP_LDS = MP_LDS + 1024; LDS_SIZE = PP_LDS + 256
WSTRIDE = 205824; WS_U = 4 * WSTRIDE; WS_TAG = WS_U + 24 * 1024; WS_SIZE = WS_TAG + 16 * 128
NPROD_W = 50; NPROD = 56
STAMP_OFF = 128 << 20
def f2u(x): return struct.unpack("<I", struct.pack("<f", x))[0]
LOG2E = 1.4426950408889634
C1 = 2 * 0.7978845608028654
K1 = -C1 * LOG2E; K2 = -C1 * 0.044715 * LOG2E

def q4(p, b): return f"{p}[{b}:{b+3}]"
def E(s, q): return q4("a", (q * 16 + s) * 4) if q < 4 else q4("v", 192 + 4 * s)
def T5(s): return q4("v", (12, 32)[s & 1])
def frag(s, q): return E(s, q) if q < 5 else T5(s)
def Rq(g): return q4("v", 48 + 4 * g)
def Dq(n): return 36 + 4 * (n % 3)
NU = 6
def Uq(T): return 64 + 4 * (T % NU)
def U1(p): return 88 + (p & 3)
URR = 12
def Aq(f, t): return 96 + 16 * (f & 1) + 4 * t
def Y(s): return 1 if 4 <= (s & 15) < 12 else 0
def Wq(j): return 128 + 4 * (j % 8)
ACC = 160
def PACC(s): return 16 + s
def IREG(p, m):
    if p < 4: return 192 + 4 * m + p
    return (252 if p == 4 else 92) + m
IR = 32
def Tidx(q, p): return p * (p + 1) // 2 + q
def X(j): return (-(j >> 2)) & 3
vCOFF, vWOFF, vA0, vCOFF1, vH, vP0, vP1, vU, vS = 1, 4, 5, 6, 7, 8, 9, 10, 11
vPOLL, vPADR, vB2, vCNT, vPF = 112, 120, 121, 122, 123
sW, sW1K, sIDX, sWOFF, sWREG, sT, sSEL, sB2, sWOFF2, sPG, sNOW, sBASE, sUO, sBW = 40, 41, 42, 43, 44, 45, 58, 59, 62, 63, 66, 67, 73, 75

def srd(e, d, b, nbytes):
    e(f"s_mov_b32 s{d}, s{b}\ns_and_b32 s{d+1}, s{b+1}, 0xffff\ns_mov_b32 s{d+2}, {nbytes}\ns_mov_b32 s{d+3}, 0x00020000")

def prod_issue_w(e):
    srd(e, 36, 10, 819200)
    e("v_lshrrev_b32 v96, 4, v0\nv_lshlrev_b32 v96, 11, v96\nv_and_b32 v97, 15, v0\nv_lshl_add_u32 v96, v97, 3, v96")
    e("s_lshl_b32 s48, s47, 13\ns_lshl_b32 s49, s46, 7\ns_add_u32 s48, s48, s49")
    for x in range(8):
        e(f"buffer_load_dwordx2 v[{128+2*x}:{129+2*x}], v96, s[36:39], s48 offen offset:{256*x}", tag=("raw", x))
def prod_finish_w(e):
    e(f"s_mul_i32 s48, s46, {2*WSTRIDE}\ns_lshl_b32 s49, s47, 11\ns_add_u32 s48, s48, s49\ns_add_u32 s49, s48, {WSTRIDE}\nv_lshlrev_b32 v97, 4, v0")
    e("s_mov_b32 s50, 0x05040100\ns_mov_b32 s51, 0x07060302")
    e.need(("raw", 7))
    for y in range(4):
        for j in range(4):
            e(f"v_perm_b32 v{100+4*y+j}, v{128+4*j+2+(y>>1)}, v{128+4*j+(y>>1)}, s{50+(y&1)}")
        e(f"buffer_store_dwordx4 {q4('v',100+4*y)}, v97, s[32:35], s{48+(y>>1)} offen offset:{1024*(y&1)} sc0 sc1", tag="st")
def prod_u(e):
    srd(e, 36, 8, 20000)
    e("v_and_b32 v94, 15, v0\nv_lshrrev_b32 v95, 4, v0")
    e("s_cmp_ge_u32 s48, 3\ns_cbranch_scc1 L_um\ns_cmp_ge_u32 s48, 1\ns_cbranch_scc1 L_u1")
    e(f"v_lshrrev_b32 v96, 2, v94\nv_mul_u32_u24 v98, 200, v95\nv_lshl_add_u32 v98, v96, 1, v98\nv_add_u32 v98, {2 * (96 * 100 + 96)}, v98\nbuffer_load_ushort v128, v98, s[36:39], 0 offen")
    e("v_and_b32 v96, 3, v0\ns_waitcnt vmcnt(0)\nv_lshlrev_b32 v128, 16, v128")
    for t in range(4): e(f"v_cmp_eq_u32 vcc, {t}, v96\nv_cndmask_b32 v{100+t}, 0, v128, vcc")
    e("s_branch L_ust")
    e.label("L_u1")
    e("s_sub_u32 s46, s48, 1\ns_lshl_b32 s46, s46, 6     ; 16 * first q")
    e(f"v_add_u32 v96, s46, v94\nv_mul_u32_u24 v98, 200, v95\nv_lshl_add_u32 v98, v96, 1, v98\nv_add_u32 v98, {2*96*100}, v98")
    e(f"v_mul_u32_u24 v99, 200, v96\nv_lshl_add_u32 v99, v95, 1, v99\nv_add_u32 v99, {2*96}, v99\nv_add_u32 v97, 6400, v99")
    for k in range(4): e(f"buffer_load_ushort v{128+k}, v98, s[36:39], 0 offen offset:{32*k}")
    for k in range(4): e(f"buffer_load_ushort v{132+k}, v{99 if k < 2 else 97}, s[36:39], 0 offen offset:{3200*(k&1)}")
    e("s_waitcnt vmcnt(0)")
    for k in range(8): e(f"v_lshlrev_b32 v{128+k}, 16, v{128+k}")
    for k in range(4): e(f"v_add_f32 v{100+k}, v{128+k}, v{132+k}")
    e("s_branch L_ust")
    e.label("L_um")
    e("s_sub_u32 s46, s48, 3\ns_mov_b32 s47, 0")
    for k in range(5):
        e("s_cmp_gt_u32 s46, s47\ns_cselect_b32 s49, 1, 0\ns_add_u32 s47, s47, s49\ns_mul_i32 s49, s49, s47\ns_sub_u32 s46, s46, s49")
    e("s_lshl_b32 s49, s47, 4\nv_add_u32 v96, s49, v94         ; column j")
    e("s_lshl_b32 s49, s46, 4\nv_lshl_add_u32 v97, v95, 2, s49")
    e("v_mul_u32_u24 v98, 200, v97\nv_lshl_add_u32 v98, v96, 1, v98")
    e("v_mul_u32_u24 v99, 200, v96\nv_lshl_add_u32 v99, v97, 1, v99")
    e("s_cmp_eq_u32 s46, s47\ns_cselect_b32 s49, 0x100000, 0\nv_add_u32 v99, s49, v99   ; diagonal tile: no transposed part")
    for r in range(4): e(f"buffer_load_ushort v{128+r}, v98, s[36:39], 0 offen offset:{200*r}")
    e("buffer_load_dwordx2 v[132:133], v99, s[36:39], 0 offen")
    e("s_waitcnt vmcnt(0)")
    for r in range(4): e(f"v_lshlrev_b32 v{128+r}, 16, v{128+r}")
    e("v_lshlrev_b32 v134, 16, v132\nv_and_b32 v135, 0xffff0000, v132\nv_lshlrev_b32 v136, 16, v133\nv_and_b32 v137, 0xffff0000, v133")
    for r in range(4): e(f"v_add_f32 v{100+r}, v{128+r}, v{134+r}")
    e.label("L_ust")
    e(f"s_lshl_b32 s48, s48, 10\ns_add_u32 s48, s48, {WS_U}\nv_lshlrev_b32 v97, 4, v0")
    e("buffer_store_dwordx4 v[100:103], v97, s[32:35], s48 offen sc0 sc1")

def stamp(e, cfg, k):
    if cfg["stamps"]: e(f"{'s_memtime' if cfg['stamps']==2 else 's_memrealtime'} s[{80+2*k}:{81+2*k}]")

def gen_main(cfg):
    e = Emit()
    sst = cfg.get("sst", []); poll = cfg["poll"]; npre = cfg["npre"]; g1pre = cfg["g1pre"]; TSH = 2
    assert 1 <= poll <= 16 and npre <= g1pre
    e.label("L_start")
    e("s_cmp_ge_u32 s2, 256\ns_cbranch_scc1 L_end")
    e("s_load_dwordx16 s[4:19], s[0:1], 0\ns_load_dwordx4 s[20:23], s[0:1], 64")
    if cfg["tags"]: e("s_memrealtime s[64:65]")
    stamp(e, cfg, 0)
    e(f"v_lshrrev_b32 v9, 6, v0\nv_and_b32 v0, 63, v0\nv_readfirstlane_b32 s{sW}, v9\nv_lshlrev_b32 v{vWOFF}, 4, v0")
    e.protect("v0", f"v{vWOFF}", f"s{sW}", "s2", *[f"s{k}" for k in range(4, 24)])
    if cfg["codepf"]:
        e("s_getpc_b64 s[46:47]")
        e.label("L_pc")
        e("s_sub_u32 s46, s46, L_pc-L_start\ns_subb_u32 s47, s47, 0")
        e(f"s_lshr_b32 s48, s2, 3\ns_and_b32 s48, s48, 31\ns_lshl_b32 s48, s48, 10\ns_lshl_b32 s49, s{sW}, 8\ns_add_u32 s48, s48, s49\ns_sub_u32 s48, s48, 1280")
        e(f"s_lshl_b32 s49, s{sW}, 9\nv_lshl_add_u32 v2, v0, 7, s49\nv_lshl_add_u32 v3, v0, 7, s48\ns_mul_i32 s49, s{sW}, 768\ns_add_u32 s49, s49, L_prod-L_start-512\nv_lshl_add_u32 v5, v0, 7, s49")
        e("v_cmp_gt_u32 vcc, 4, v0\nv_cndmask_b32 v5, v5, v2, vcc\nv_cmp_gt_u32 vcc, 10, v0\nv_cndmask_b32 v5, v3, v5, vcc\nv_min_u32 v5, L_codeend-L_start-4, v5")
        e(f"s_mov_b64 exec, 0xfff\nglobal_load_dword v{vPF}, v5, s[46:47]\ns_mov_b64 exec, -1")
    e(f"s_mul_i32 s{sWREG}, s{sW}, {WREG}\ns_lshl_b32 s{sIDX}, s2, 6\ns_lshl_b32 s{sT}, s{sW}, 4\ns_add_u32 s{sIDX}, s{sIDX}, s{sT}\ns_mul_i32 s{sIDX}, s{sIDX}, 400")
    e(f"s_add_u32 m0, s{sWREG}, {BUF}\ns_mov_b32 s26, 6553600\ns_mov_b32 s27, 0x00020000\ns_add_u32 s{sT}, s{sIDX}, 4096")
    e.protect(f"s{sWREG}", f"s{sIDX}", "s26", "s27")
    if cfg["pmap"]: e(f"s_lshr_b32 s{sPG}, s2, 3\ns_lshl_b32 s{sPG}, s{sPG}, 2\ns_and_b32 s46, s2, 3\ns_or_b32 s{sPG}, s{sPG}, s46\ns_and_b32 s46, s2, 4\ns_lshl_b32 s46, s46, 6\ns_or_b32 s{sPG}, s{sPG}, s46")
    else: e(f"s_mov_b32 s{sPG}, s2")
    e(f"s_cmp_lt_u32 s{sPG}, {NPROD}")
    e("s_waitcnt lgkmcnt(0)")
    e("s_cbranch_scc1 L_prod")
    def idx_dma(setup):
        if setup: e(f"s_add_u32 m0, s{sWREG}, {BUF}\ns_add_u32 s{sT}, s{sIDX}, 4096")
        e("s_mov_b32 s24, s4\ns_and_b32 s25, s5, 0xffff")
        for k in range(7):
            if k == 4: e("s_add_u32 m0, m0, 4096")
            if k == 6: e("s_mov_b64 exec, 0xffff")
            e(f"buffer_load_dwordx4 v{vWOFF}, s[24:27], s{sIDX if k < 4 else sT} offen offset:{1024*(k%4)} nt lds", tag="idx")
        e("s_mov_b64 exec, -1")
    shifted = set(); gcount = [0]
    def Ird(p):
        for m in range(4): e(f"ds_read_b32 v{IREG(p,m)}, v5 offset:{1600*m+64*p}", tag=("I", p, m))
    def shift_idx(p, m):
        if (p, m) in shifted: return
        shifted.add((p, m)); e.need(("I", p, m))
        r = IR if p == "R" else IREG(p, m)
        e(f"v_lshlrev_b32 v{r}, 6, v{r}")
    def G(p, s):
        t = 2 + (gcount[0] & 1); gcount[0] += 1
        if p == "R":
            shift_idx("R", 0); r = IR; j = s
            e(f"s_add_u32 m0, s74, {s*1024}")
        else:
            shift_idx(p, s >> 2); r = IREG(p, s >> 2); j = s & 3
            e(f"s_add_u32 m0, s{sWREG}, {(p&1)*BUF + s*SS}")
        c = vCOFF1 if (p != "R" and Y(s)) else vCOFF
        e(f"v_add_u32_dpp v{t}, v{r}, v{c} quad_perm:[{j},{j},{j},{j}] row_mask:0xf bank_mask:0xf")
        e(f"buffer_load_dwordx4 v{t}, s[28:31], 0 offen lds", tag=("G", p, s))
    def Wtxt(j): return f"buffer_load_dwordx4 {q4('v', Wq(j))}, v{vWOFF}, s[32:35], s{(sWOFF, sWOFF2)[(j>>2)&1]} offen offset:{(j%4)*1024} sc1"
    def Winc(j):
        r = (sWOFF, sWOFF2)[(j >> 2) & 1]
        return f"s_sub_u32 s{r}, s{r}, {192*1024}" if j < 8 else f"s_add_u32 s{r}, s{r}, 8192"
    def W(j):
        e(Wtxt(j), tag=("W", j))
        if j % 4 == 3: e(Winc(j))
    def Utxt(k): return [f"s_add_u32 m0, s{sW1K}, {U_BASE + 4096*k}", f"buffer_load_dwordx4 v{vWOFF}, s[32:35], s{sUO} offen sc1 lds", f"s_add_u32 s{sUO}, s{sUO}, 4096"]
    tags = cfg["tags"]
    polltxt = f"buffer_load_dword v{vPOLL}, v{vPADR}, s[32:35], 0 offen sc1" if tags else f"buffer_load_dword v{vPOLL}, v{vPADR}, s[68:71], 0 offen sc1"
    keep = [f"v{vCOFF}", f"v{vCOFF1}", f"v{vPADR}"] + [f"s{k}" for k in list(range(24, 26)) + list(range(28, 36)) + list(range(68, 72))]
    def opening(x):
        shifted.clear(); gcount[0] = 0
        srd(e, 28, 6, 6400000)
        e("v_and_b32 v2, 3, v0\nv_lshrrev_b32 v3, 4, v0")
        e(f"v_sub_u32 v{vCOFF}, 0, v3\nv_and_b32 v{vCOFF}, 3, v{vCOFF}\nv_xor_b32 v{vCOFF}, v{vCOFF}, v2\nv_lshlrev_b32 v{vCOFF}, 4, v{vCOFF}\nv_xor_b32 v{vCOFF1}, 16, v{vCOFF}")
        e(f"v_mul_u32_u24 v5, 400, v2\nv_lshrrev_b32 v8, 2, v0\nv_lshl_add_u32 v5, v8, 2, v5\ns_add_u32 s{sT}, s{sWREG}, {BUF}\nv_add_u32 v5, s{sT}, v5")
        e(f"v_mul_u32_u24 v7, 1600, v2\nv_and_b32 v8, 3, v8\nv_mul_u32_u24 v8, 400, v8\nv_add_u32 v7, v7, v8\nv_lshl_add_u32 v7, v3, 2, v7\nv_add_u32 v7, s{sT}, v7")
        e(f"s_lshl_b32 s74, s{sW}, 12\ns_add_u32 s74, s74, {R_BASE}")
        if not x: e.need("idx")
        e(f"ds_read_b32 v{IR}, v7 offset:384", tag=("I", "R", 0))
        Ird(0); Ird(1); Ird(2)
        if not sst: stamp(e, cfg, 1)
        for g in range(4): G("R", g)
        for s in range(16):
            G(0, s)
            if s == 0:
                if not x: srd(e, 32, 22, WS_SIZE); srd(e, 68, 20, 256)
                if not tags: e(f"s_and_b32 s{sT}, s2, 1\ns_lshl_b32 s{sT}, s{sT}, 7\nv_mov_b32 v{vPADR}, s{sT}")
                if tags: e(f"s_lshr_b64 s[64:65], s[64:65], 9\ns_mov_b32 s{sNOW}, s64")
                if tags: e(f"v_min_u32 v{vPADR}, {NPROD-1}, v0\nv_lshrrev_b32 v8, {TSH}, v{vPADR}\nv_and_b32 v{vPADR}, {(1<<TSH)-1}, v{vPADR}\nv_lshlrev_b32 v{vPADR}, 2, v{vPADR}\nv_lshl_add_u32 v{vPADR}, v8, 7, v{vPADR}\nv_add_u32 v{vPADR}, {WS_TAG}, v{vPADR}")
                e.protect("v5", *keep)
                e.need(("I", 2, 3)); Ird(3); Ird(4); Ird(5)
            if s + 1 == poll:
                e(f"s_cmp_lg_u32 s{sW}, 0\ns_cbranch_scc1 L_np{x}")
                e.uncounted(polltxt)
                e.label(f"L_np{x}")
        e(f"s_lshl_b32 s{sW1K}, s{sW}, 10\ns_mul_i32 s{sWOFF}, s{sW}, {WSTRIDE}\ns_add_u32 s{sWOFF}, s{sWOFF}, {192*1024}\ns_add_u32 s{sWOFF2}, s{sWOFF}, 4096\ns_add_u32 s{sUO}, s{sW1K}, {WS_U}")
        e(f"v_lshrrev_b32 v2, 4, v0\nv_lshlrev_b32 v2, 5, v2\ns_lshr_b32 s{sT}, s{sW}, 1\ns_lshl_b32 s{sT}, s{sT}, 7\ns_and_b32 s{sBW}, s{sW}, 1\ns_lshl_b32 s{sBW}, s{sBW}, 2\ns_add_u32 s{sBW}, s{sBW}, s{sT}\nv_add_u32 v2, s{sBW}, v2")
        srd(e, 36, 12, 256)
        for r in range(4): e(f"buffer_load_dword v{96+r}, v2, s[36:39], 0 offen offset:{8*r}", tag="b1")
        srd(e, 36, 16, 2)
        e(f"buffer_load_ushort v{vB2}, off, s[36:39], 0", tag="b2")
        srd(e, 36, 14, 256)
        e(f"s_mov_b32 m0, {W2_LDS}\nv_lshlrev_b32 v2, 2, v0\nbuffer_load_dword v2, s[36:39], 0 offen lds", tag="w2")
        if x: e("s_branch L_join")
    idx_dma(False)
    opening("")
    e.label("L_join")
    e("s_nop 1")
    e.protect(f"s{sW1K}", f"s{sBW}", f"v{vB2}", f"v{vPF}", f"v{vPOLL}", *[f"v{96+k}" for k in range(4)])
    e(f"v_lshrrev_b32 v3, 4, v0\nv_lshlrev_b32 v{vH}, 4, v3      ; chunk * 16")
    e(f"v_bfe_u32 v2, v0, 2, 2\nv_sub_u32 v9, 0, v2\nv_and_b32 v9, 3, v9\nv_xor_b32 v9, v9, v3\nv_and_b32 v{vP0}, 15, v0\nv_lshlrev_b32 v{vP0}, 6, v{vP0}\nv_lshl_add_u32 v{vP0}, v9, 4, v{vP0}")
    e(f"v_add_u32 v33, s74, v{vP0}")
    e(f"v_add_u32 v{vP0}, s{sWREG}, v{vP0}\nv_add_u32 v{vP1}, {BUF}, v{vP0}")
    e(f"v_bfe_u32 v{vS}, v0, 2, 2\nv_lshlrev_b32 v{vS}, 10, v{vS}\nv_and_b32 v2, 3, v0\nv_lshl_add_u32 v{vS}, v2, 6, v{vS}\nv_add_u32 v{vS}, {R_BASE}, v{vS}")
    e(f"v_add_u32 v{vU}, {U_BASE}, v{vWOFF}")
    e.protect(f"v{vU}", "v33")
    for s in range(16): e(f"v_mov_b32 v{PACC(s)}, 0")
    for p in range(1, 6):
        for m in range(4): shift_idx(p, m)
    for s in range(npre): G(1, s)
    e.need(("G", "R", 3))
    e(f"s_cmp_lg_u32 s{sW}, 0\ns_cbranch_scc1 L_ready")
    e.release(f"v{vPOLL}")
    def tagcheck(span):
        e(f"v_subrev_u32 v{vPOLL}, s{sBASE}, v{vPOLL}\nv_cmp_lt_u32 vcc, {span}, v{vPOLL}\ns_nop 0\ns_cbranch_vccz L_ready")
    if tags:
        e(f"s_sub_u32 s{sBASE}, s{sNOW}, 2")
        e(f"s_waitcnt vmcnt({16 - poll + 6 + npre})")
        tagcheck(4)
        e(f"s_mov_b32 s{sT}, 0")
        e.label("L_spin")
        e.uncounted(polltxt)
        e.uncounted(f"buffer_load_dword v{vCNT}, off, s[68:71], 0 sc1")
        e(f"s_memrealtime s[64:65]\ns_add_u32 s{sT}, s{sT}, 1\ns_waitcnt vmcnt(0) lgkmcnt(0)\nv_cmp_le_u32 vcc, {NPROD}, v{vCNT}\ns_lshr_b64 s[64:65], s[64:65], 9\ns_cbranch_vccnz L_ready")
        e(f"s_sub_u32 s72, s64, s{sBASE}\ns_add_u32 s72, s72, 1")
        tagcheck("s72")
    else:
        e(f"s_waitcnt vmcnt({16 - poll + 6 + npre})")
        e(f"v_cmp_le_u32 vcc, {NPROD}, v{vPOLL}\ns_nop 0\ns_cbranch_vccnz L_ready")
        e(f"s_mov_b32 s{sT}, 0")
        e.label("L_spin")
        e.uncounted(polltxt)
        e(f"s_add_u32 s{sT}, s{sT}, 1\ns_waitcnt vmcnt(0)\nv_cmp_le_u32 vcc, {NPROD}, v{vPOLL}\ns_nop 0\ns_cbranch_vccnz L_ready")
    e(f"s_sleep 8\ns_cmp_lt_u32 s{sT}, 0x20000\ns_cbranch_scc1 L_spin")
    e.label("L_ready")
    e("s_barrier")
    if not sst: stamp(e, cfg, 2)
    for j in range(4): W(j)
    for k in range(3):
        a, b, c = Utxt(k); e(a); e(b, tag="U1"); e(c)
    for j in range(4, 8): W(j)
    for g in range(4): e(f"ds_read_b128 {Rq(g)}, v33 offset:{g*1024}", tag=("R", g))
    for s in range(npre, g1pre): G(1, s)
    e.need("b1", "b2", "w2")
    e.release(f"v{vB2}", f"v{vPF}", f"v{vPADR}", "v5", "v33")
    e(f"v_lshlrev_b32 v{vB2}, 16, v{vB2}")
    for r in range(4):
        for t in range(4): e(f"v_lshlrev_b32 v{ACC+4*t+r}, 16, v{96+r}\nv_and_b32 v{ACC+16+4*t+r}, 0xffff0000, v{96+r}")
    e(f"v_readfirstlane_b32 s{sB2}, v{vB2}")
    e.release(*[f"v{96+k}" for k in range(4)])
    e.protect(f"s{sB2}", *[f"v{48+k}" for k in range(16)])
    if cfg["stamps"] and -2 in cfg["stamp_stages"]: stamp(e, cfg, 3 + cfg["stamp_stages"].index(-2))

    stage_of = lambda f: -1 if f < 4 else (f - 4) // 16
    last_of = {p: 4 + 16 * p + 15 for p in range(-1, 5)}; last_of[-1] = 3
    bar_at = {f: p for p, f in last_of.items()}
    scal, mem, valu, fm, gq = deque(), deque(), deque(), deque(), deque()
    slot = [0]; tile_n = [0]; nextU = [0]; deadU = set(); gstate = [None]; barriers_done = set()
    def Axad(f):
        if f < 4: x = X(4 * f)
        else:
            j = (f - 4) % 16
            if j % 4: return []
            x = X(j)
        return [f"v_xad_u32 v{vA0}, v{vH}, {x<<4}, v{vS}"]
    def Ard(f):
        off = (lambda t: t * 4096 + f * 256) if f < 4 else (lambda t: t * 16 * SS + ((f - 4) % 16) * 64)
        return [(f"ds_read_b128 {q4('v', Aq(f,t))}, v{vA0} offset:{off(t)}", ("A", f, t)) for t in range(4)]
    def Prd(p, s):
        r = vP0 + (p & 1)
        flip = [(f"v_xor_b32 v{r}, 16, v{r}", None)] if s in (4, 12) else []
        return flip + [(f"ds_read_b128 {frag(s,p)}, v{r} offset:{s*SS}", ("P", p, s))]
    def pump_U():
        while nextU[0] < 21 and (nextU[0] < NU or (nextU[0] - NU) in deadU) and (-1 in barriers_done) and (nextU[0] < 9 or 1 in barriers_done):
            T = nextU[0]; mem.append((f"ds_read_b128 {q4('v', Uq(T))}, v{vU} offset:{(3+T)*1024}", ("U", T))); nextU[0] += 1
    def pump_G():
        if gstate[0] is None and gq:
            p, s = gq.popleft()
            if p == "U":
                a, b, c = Utxt(s)
                st = dict(left=1, load=(b, ("U2", s)), after=c)
                scal.append((a, lambda: mark(st), slot[0]))
            else:
                t = 2 + (gcount[0] & 1); gcount[0] += 1; j = s & 3
                st = dict(left=2, load=(f"buffer_load_dwordx4 v{t}, s[28:31], 0 offen lds", ("G", p, s)), after=None)
                scal.append((f"s_add_u32 m0, s{sWREG}, {(p&1)*BUF + s*SS}", lambda: mark(st), slot[0]))
                valu.append((f"v_add_u32_dpp v{t}, v{IREG(p, s>>2)}, v{vCOFF1 if Y(s) else vCOFF} quad_perm:[{j},{j},{j},{j}] row_mask:0xf bank_mask:0xf", lambda: mark(st)))
            gstate[0] = st
    def mark(st):
        st["left"] -= 1
        if st["left"] == 0: st["ready_slot"] = slot[0] + 1
    def emit_scal(upto=1 << 30):
        for it in scal:
            if it[2] <= upto:
                scal.remove(it); e(it[0])
                if it[1]: it[1]()
                return True
        return False
    def emit_valu():
        it = valu.popleft()
        if isinstance(it, str): e(it)
        else:
            e(it[0]); it[1]()
    def emit_mem():
        it = mem.popleft()
        e(it[0], tag=it[1])
        return 0.8 if it[0].startswith("ds_") else 0.3
    def emit_gload():
        st = gstate[0]
        if st is not None and st["left"] == 0 and st["ready_slot"] <= slot[0]:
            e(st["load"][0], tag=st["load"][1])
            if st["after"]: e(st["after"])
            gstate[0] = None; pump_G(); return 0.75
        return 0
    def force_G(tag):
        while tag not in e.tags:
            assert gstate[0] is not None, tag
            st = gstate[0]
            while st["left"]:
                if scal: emit_scal()
                if st["left"] and valu: emit_valu()
            st["ready_slot"] = slot[0]; emit_gload()
    def ensure(tg):
        for t in tg:
            if t[0] in ("G", "U2"): force_G(t)
            while t not in e.tags: emit_mem()
    def fm_ready(): return fm and (e.pos - fm[0]["pos"] - 1) >= 8
    def emit_fm():
        t = fm[0]; acc, d, u = t["ops"].pop(0)
        if t["need"]: ensure([t["need"]]); e.need(t["need"]); t["need"] = None
        if not cfg.get("nofma"): e(f"v_fmac_f32 v{acc}, v{d}, v{u}")
        if not t["ops"]:
            fm.popleft()
            if t["done"]: t["done"]()
    def flush_fm(upto):
        while fm and fm[0]["n"] <= upto:
            if not fm_ready() and valu: emit_valu()
            else: emit_fm()
    extra = deque()
    red = []
    P = PACC
    for s in range(8): red += [f"v_permlane32_swap_b32 v{P(s)}, v{P(s+8)}"]
    for s in range(8): red += [f"v_add_f32 v{P(s)}, v{P(s)}, v{P(s+8)}"]
    for s in range(4): red += [f"v_permlane16_swap_b32 v{P(s)}, v{P(s+4)}"]
    for s in range(4): red += [f"v_add_f32 v{P(s)}, v{P(s)}, v{P(s+4)}"]
    for s in range(2): red += [f"v_add_f32_dpp v{P(s+4)}, v{P(s)}, v{P(s)} row_ror:8 row_mask:0xf bank_mask:0xf"]
    for s in range(2): red += [f"v_add_f32_dpp v{P(s+4)}, v{P(s+2)}, v{P(s+2)} row_ror:8 row_mask:0xf bank_mask:0xc"]
    red += [f"v_add_f32_dpp v{P(0)}, v{P(4)}, v{P(4)} row_half_mirror row_mask:0xf bank_mask:0xf"]
    red += [f"v_and_b32 v3, 60, v0", f"v_add_f32_dpp v{P(0)}, v{P(5)}, v{P(5)} row_half_mirror row_mask:0xf bank_mask:0xa"]
    red += [f"s_lshl_b32 s{sT}, s{sW}, 6", f"s_add_u32 s{sT}, s{sT}, {PP_LDS}"]
    red += [f"v_add_f32_dpp v{P(0)}, v{P(0)}, v{P(0)} quad_perm:[1,0,3,2] row_mask:0xf bank_mask:0xf", f"v_add_u32 v3, s{sT}, v3"]
    red += [f"s_add_u32 s{sT}, s{sBW}, {W2_LDS}", "v_lshrrev_b32 v2, 4, v0", f"v_lshl_add_u32 v2, v2, 5, s{sT}", f"v_add_f32_dpp v{P(0)}, v{P(0)}, v{P(0)} quad_perm:[2,3,0,1] row_mask:0xf bank_mask:0xf"]
    W2R = 64
    red += [f"ds_write_b32 v3, v{P(0)}"]
    red += [f"ds_read_b32 v{W2R+r}, v2 offset:{8*r}" for r in range(4)]
    red += [f"s_mov_b32 s60, {hex(f2u(K2))}", f"s_mov_b32 s61, {hex(f2u(K2))}", f"v_mov_b32 v36, {hex(f2u(K1))}", f"v_mov_b32 v37, {hex(f2u(K1))}", "v_mov_b32 v38, 1.0", "v_mov_b32 v39, 1.0"]
    red += [f"s_mov_b32 s36, s18", "s_and_b32 s37, s19, 0xffff", "s_mov_b32 s38, 32768", "s_mov_b32 s39, 0x00020000"]

    LAG = cfg["plag"]; GEND = cfg["gend"]
    units = [(4 + cfg["p0off"] + s * (15 - cfg["p0off"]) / 16.0, 0, s) for s in range(16)]
    PEND = cfg["pend"] if isinstance(cfg["pend"], (list, tuple)) else [cfg["pend"]] * 5
    tprev = 0
    for p in range(1, 6):
        t0 = max(4 + 16 * (p - 1) + LAG, tprev); t1 = 4 + 16 * p + PEND[p - 1]
        units += [(t0 + s * (t1 - t0) / 16.0, p, s) for s in range(16)]; tprev = t1
    units.sort()
    ops = []
    for f in range(100):
        for k in range(8):
            if cfg["order"] == "u": u, tt = k >> 2, (k if k < 4 else 7 - k)
            else: u, tt = (1 ^ (k & 1) ^ ((k >> 1) & 1)), k >> 1
            ops.append(dict(t=f + k / 8.0 - 1e-4, kind="M", f=f, k=k, u=u, tt=tt))
    ntiles = 0
    for u, (t0, p, s) in enumerate(units):
        tl = [("N", k) for k in range(p + 1)] + [("R", p)] + ([("RR", s >> 2)] if p == 0 and s % 4 == 0 else [])
        t1 = units[u + 1][0] if u + 1 < len(units) else t0 + 1
        for k, x in enumerate(tl): ops.append(dict(t=t0 + (k + 0.5) * (t1 - t0) / len(tl), kind="P", u=u, first=(k == 0), tile=x, p=p, s=s))
        ntiles += len(tl)
    ops.sort(key=lambda o: o["t"])
    gt = []
    for p in range(1, 6):
        for s in range(16):
            if p == 1 and s < g1pre: continue
            ge = GEND[p - 1] if isinstance(GEND, (list, tuple)) else GEND
            t = 4 + 16 * (p - 1) - 1 + s * (16 - ge) / 15.0
            if p == 1: t = (s - g1pre) * (19 - ge) / max(1.0, 15.0 - g1pre)
            gt.append((t, p, s))
    for k in range(3, 6): gt.append((19 + 2.1 + 3 * (k - 3), "U", k))
    gt = deque(sorted(gt, key=lambda x: x[0]))
    for o in ops:
        if o["kind"] == "M":
            f, k8 = o["f"], o["k"]
            if cfg["order"] == "u": o["needs"] = {0: [("A", f, 1), ("W", 2 * f)], 2: [("A", f, 3)], 4: [("W", 2 * f + 1)]}.get(k8, [])
            else: o["needs"] = {0: [("A", f, 1), ("W", 2 * f + 1)], 4: [("A", f, 3)]}.get(k8, [])
        else:
            o["needs"] = [("P", o["p"], o["s"])] if o["first"] else []
            if o["tile"][0] in ("R", "RR"): o["needs"] = o["needs"] + [("R", o["s"] >> 2)]
    for x in Axad(0): e(x)
    mem.extend(Ard(0))
    while mem: emit_mem()
    for x in Axad(1): e(x)
    red_queued = False
    def released(g):
        if g[1] == "U": return 0 in barriers_done
        return g[1] < 2 or (g[1] - 2) in barriers_done
    for k, o in enumerate(ops):
        slot[0] = k
        ensure(o["needs"]); e.need(*o["needs"])
        gate = []
        if o["kind"] == "M":
            f, k8, u, tt = o["f"], o["k"], o["u"], o["tt"]
            if k8 == 0 and f in sst: stamp(e, cfg, 1 + sst.index(f))
            c = q4("v", ACC + 16 * u + 4 * tt)
            if not cfg.get("nom"): e(f"v_mfma_f32_16x16x32_bf16 {c}, {q4('v', Wq(2*f+u))}, {q4('v', Aq(f,tt))}, {c}")
            j = 2 * f + u + 8
            if k8 in ((3, 7) if cfg["order"] == "u" else (6, 7)) and j < 200:
                if j % 4 == 0:
                    for it in [x for x in scal if x[0] == Winc(j)]: scal.remove(it); e(it[0])
                mem.appendleft((Wtxt(j), ("W", j)))
                if j % 4 == 3: scal.append((Winc(j), None, k + 1))
            if k8 == 0 and f < 99:
                while any(isinstance(x, str) for x in valu): emit_valu()
                assert f not in bar_at or bar_at[f] in barriers_done
                mem.extend(Ard(f + 1))
            if k8 == 4 and f < 98:
                while any(m[1] and m[1][0] == "A" for m in mem): emit_mem()
                if f + 2 == 4:
                    valu.extend([f"v_and_b32 v{vS}, 15, v0", f"v_add_u32 v{vA0}, 4, v{vS}", f"v_and_b32 v{vA0}, 8, v{vA0}", f"v_lshlrev_b32 v{vA0}, 1, v{vA0}",
                                 f"v_xor_b32 v{vH}, v{vH}, v{vA0}", f"v_mul_u32_u24 v{vS}, {SS}, v{vS}"])
                elif f + 2 > 4 and (f + 2 - 4) % 16 == 0: valu.append(f"{'v_add_u32' if stage_of(f) % 2 == 0 else 'v_subrev_u32'} v{vS}, {BUF}, v{vS}")
                valu.extend(Axad(f + 2))
            budget = 2
        else:
            n = tile_n[0]; flush_fm(n - 3)
            q, s = o["p"], o["s"]; kind, x = o["tile"]; D = Dq(n)
            if kind == "N":
                T = Tidx(x, q); A, B = frag(s, x), frag(s, q)
                item = dict(ops=[(PACC(s), D + r, Uq(T) + r) for r in range(4)], need=("U", T), done=((lambda T=T: (deadU.add(T), pump_U())) if s == 15 else None))
            elif kind == "R":
                A, B = Rq(s >> 2), frag(s, q)
                done = None
                if s == 15 and q < 2: done = (lambda q=q: mem.append((f"ds_read_b32 v{U1(q+4)}, v{vU} offset:{2*1024 + 4*q}", ("U1", q + 4))))
                item = dict(ops=[(PACC(s), D + (s & 3), U1(q))], need=("U1", q), done=done)
            else:
                A = B = Rq(x)
                item = dict(ops=[(PACC(4 * x + t), D + t, URR + t) for t in range(4)], need=("URR",), done=None)
            if not cfg.get("nop"): e(f"v_mfma_f32_16x16x32_bf16 {q4('v', D)}, {A}, {B}, 0")
            item.update(n=n, pos=e.pos - 1); fm.append(item); tile_n[0] += 1
            if o["first"] and o["u"] + 1 < len(units):
                _, q2, s2 = units[o["u"] + 1]
                gate = [("G", q2, s2)]; ensure(gate); mem.extend(Prd(q2, s2))
            budget = 2
        nxt = ops[k + 1] if k + 1 < len(ops) else None
        before = len(e.lines)
        bar = nxt and nxt["kind"] == "M" and nxt["k"] == 0 and nxt["f"] in bar_at
        if bar:
            fb = nxt["f"]; pb = bar_at[fb]
            held = [m for m in mem if (m[1] is None or m[1][0] == "P") and gate]
            for m in held: mem.remove(m)
            if gate: e.need(*gate)
            want = [("A", fb, t) for t in range(4)] + [("G", pb + 1, 15)] + nxt["needs"]
            if pb >= 0: want += [("P", pb, s) for s in range(16)]
            if pb == 0: want += [("R", g) for g in range(4)]
            if pb == 1: want += [("U2", 5)]
            ensure(want); e.need(*want)
            if pb == -1: e.need("U1")
            e("s_barrier")
            barriers_done.add(pb)
            mem.extend(held)
            if pb == -1:
                mem.append((f"ds_read_b128 {q4('v', URR)}, v{vU} offset:0", ("URR",)))
                mem.append((f"ds_read_b128 {q4('v', U1(0))}, v{vU} offset:1024", ("U1", 0)))
                for q in range(1, 4): e.tags[("U1", q)] = None
                mem.extend(Prd(units[0][1], units[0][2]))
            pump_U()
            if cfg["stamps"] and pb in cfg["stamp_stages"]: stamp(e, cfg, 3 + cfg["stamp_stages"].index(pb))
        else:
            want = list(gate)
            if nxt and all(t in e.tags for t in nxt["needs"]): want += nxt["needs"]
            e.need(*want)
        if ("U1", 0) in e.tags and e.tags.get(("U1", 1), 0) is None:
            for q in range(1, 4): e.tags[("U1", q)] = e.tags[("U1", 0)]
        while gt and gt[0][0] <= o["t"] and released(gt[0]):
            _, gp, gs = gt.popleft(); gq.append((gp, gs))
        pump_G()
        if len(e.lines) == before: emit_scal(k)
        budget -= emit_gload()
        nm = 0
        while mem and nm < 2: budget -= emit_mem(); nm += 1
        if not red_queued and tile_n[0] == ntiles and not fm:
            red_queued = True; extra.extend(red)
        while budget > 0.5:
            if valu: emit_valu()
            elif fm_ready(): emit_fm()
            elif emit_scal(k - 1): pass
            elif extra: e(extra.popleft())
            elif fm and tile_n[0] == ntiles: emit_fm()
            else: break
            budget -= 1
        if nxt and nxt["kind"] == "P": flush_fm(tile_n[0] - 3)
    assert not gt and not gq and gstate[0] is None and not scal and nextU[0] == 21
    while mem: emit_mem()
    while valu: emit_valu()
    flush_fm(1 << 30)
    if not red_queued: extra.extend(red)
    while extra: e(extra.popleft())
    stamp(e, cfg, 6)
    e.drain(vm=False)
    for r in range(4): e(f"v_lshlrev_b32 v{68+r}, 16, v{W2R+r}\nv_and_b32 v{72+r}, 0xffff0000, v{W2R+r}")
    TA = [96, 98, 100, 102]; M = [104, 106, 108, 110]
    groups = [(u, r, t0) for u in range(2) for r in (0, 2) for t0 in (0, 2)]
    for gi, (u, r, t0) in enumerate(groups):
        wf = 68 + 4 * u + r
        ts = (t0, t0 + 1)
        x = {t: f"v[{ACC+16*u+4*t+r}:{ACC+16*u+4*t+r+1}]" for t in ts}
        tb = {t: TA[2 * (gi & 1) + (t & 1)] for t in ts}
        T = {t: f"v[{tb[t]}:{tb[t]+1}]" for t in ts}
        for t in ts: e(f"v_pk_mul_f32 {T[t]}, {x[t]}, {x[t]}")
        for t in ts: e(f"v_pk_fma_f32 {T[t]}, {T[t]}, s[60:61], v[36:37]")
        for t in ts: e(f"v_pk_mul_f32 {T[t]}, {T[t]}, {x[t]}")
        for t in ts: e(f"v_exp_f32 v{tb[t]}, v{tb[t]}\nv_exp_f32 v{tb[t]+1}, v{tb[t]+1}")
        for t in ts: e(f"v_pk_mul_f32 {x[t]}, {x[t]}, v[{wf}:{wf+1}]")
        for t in ts: e(f"v_pk_add_f32 {T[t]}, {T[t]}, v[38:39]")
        for t in ts: e(f"v_rcp_f32 v{tb[t]}, v{tb[t]}\nv_rcp_f32 v{tb[t]+1}, v{tb[t]+1}")
        for t in ts:
            m = f"v[{M[t]}:{M[t]+1}]"
            e(f"v_pk_mul_f32 {m}, {x[t]}, {T[t]}" if (u == 0 and r == 0) else f"v_pk_fma_f32 {m}, {x[t]}, {T[t]}, {m}")
    for t in range(4): e(f"v_add_f32 v{M[t]}, v{M[t]}, v{M[t]+1}")
    e(f"v_lshlrev_b32 v2, 2, v0\ns_lshl_b32 s{sT}, s{sW}, 8\ns_add_u32 s{sT}, s{sT}, {MP_LDS}")
    e(f"v_permlane32_swap_b32 v{M[0]}, v{M[2]}\nv_permlane32_swap_b32 v{M[1]}, v{M[3]}\nv_add_u32 v3, s{sT}, v2\nv_add_f32 v{M[0]}, v{M[0]}, v{M[2]}\nv_add_f32 v{M[1]}, v{M[1]}, v{M[3]}")
    e(f"v_permlane16_swap_b32 v{M[0]}, v{M[1]}\nv_add_f32 v12, v{M[0]}, v{M[1]}")
    e("ds_write_b32 v3, v12")
    e.drain(vm=False)
    e("s_barrier")
    e(f"s_cmp_lg_u32 s{sW}, 0\ns_cbranch_scc1 L_end")
    e(f"v_add_u32 v3, {MP_LDS}, v2")
    for k in range(5): e(f"ds_read_b32 v{12+k}, v3 offset:{256*k}")
    e(f"s_lshl_b32 s{sT}, s2, 7\nv_lshlrev_b32 v2, 1, v0")
    e.drain(vm=False)
    e(f"v_add_f32 v12, v12, v13\nv_add_f32 v14, v14, v15\nv_add_f32 v16, s{sB2}, v16\nv_add_f32 v12, v12, v14\nv_add_f32 v12, v12, v16")
    e("v_cvt_pk_bf16_f32 v12, v12, v12")
    e(f"buffer_store_short v12, v2, s[36:39], s{sT} offen")
    if cfg["stamps"]:
        stamp(e, cfg, 7)
        e("s_waitcnt lgkmcnt(0)\nv_cmp_eq_u32 vcc, 0, v0\ns_and_saveexec_b64 s[46:47], vcc")
        srd(e, 36, 22, STAMP_OFF + 256 * 64)
        e(f"s_lshl_b32 s{sT}, s2, 6\ns_add_u32 s{sT}, s{sT}, {STAMP_OFF}")
        for k in range(8):
            e(f"v_mov_b32 v2, s{80+2*k}\nv_mov_b32 v3, s{81+2*k}\nbuffer_store_dwordx2 v[2:3], off, s[36:39], s{sT} offset:{8*k}\ns_nop 1")
    e.label("L_end")
    e("s_endpgm")
    e.label("L_prod")
    e.vm_n = e.vm_done = e.lg_n = e.lg_done = 0
    e.release(*keep, f"s{sW1K}", f"s{sBW}", f"v{vU}", f"s{sB2}", *[f"v{48+k}" for k in range(16)])
    e("s_nop 4")
    srd(e, 32, 22, WS_SIZE); srd(e, 68, 20, 256)
    e(f"s_cmp_ge_u32 s{sPG}, {NPROD_W}\ns_cbranch_scc1 L_produ")
    e(f"s_and_b32 s46, s{sW}, 1\ns_lshr_b32 s47, s{sW}, 1\ns_lshl_b32 s48, s{sPG}, 1\ns_add_u32 s47, s47, s48")
    prod_issue_w(e); prod_finish_w(e); e("s_branch L_prodst")
    e.label("L_produ")
    e(f"s_sub_u32 s48, s{sPG}, {NPROD_W}\ns_lshl_b32 s48, s48, 2\ns_add_u32 s48, s48, s{sW}")
    prod_u(e)
    e.label("L_prodst")
    idx_dma(True)
    e(f"s_waitcnt vmcnt(7)\ns_barrier\ns_cmp_lg_u32 s{sW}, 0\ns_cbranch_scc1 L_nosig")
    if tags:
        e(f"s_lshr_b32 s46, s{sPG}, {TSH}\ns_lshl_b32 s46, s46, 7\ns_and_b32 s47, s{sPG}, {(1<<TSH)-1}\ns_lshl_b32 s47, s47, 2\ns_add_u32 s46, s46, s47\ns_add_u32 s46, s46, {WS_TAG}")
        e("s_lshr_b64 s[48:49], s[64:65], 9\nv_mov_b32 v98, s48\nv_mov_b32 v97, 1\ns_mov_b64 exec, 1\nbuffer_store_dword v98, off, s[32:35], s46 sc0 sc1")
        e("buffer_atomic_add v97, off, s[68:71], 0 sc1\ns_mov_b64 exec, -1")
        e("s_waitcnt vmcnt(2)\ns_branch L_sigdone")
    else:
        e("v_lshlrev_b32 v96, 7, v0\nv_mov_b32 v97, 1\ns_mov_b64 exec, 3\nbuffer_atomic_add v97, v96, s[68:71], 0 offen sc1\ns_mov_b64 exec, -1")
        e("s_waitcnt vmcnt(1)\ns_branch L_sigdone")
    e.label("L_nosig")
    e("s_waitcnt vmcnt(0)")
    e.label("L_sigdone")
    e.vm_n = e.vm_done = 0
    opening("p")
    e.label("L_codeend")
    return e

def kernel(name, e):
    return f".globl {name}\n.p2align 8\n.type {name},@function\n{name}:\n" + e.text()

NOTES = """;
; One workgroup = 64 samples on one CU (4 waves, 512 registers each).  Generated by a scheduling script; hand-designed.
;  * Embedding rows are gathered straight into LDS (buffer_load ... lds), 16 rows per instruction.  Fields 0..95 form 6 fragments of 16
;    (two LDS buffers hold the one in use and the next); fields 96..99 form block R, loaded first and kept packed 4 samples per operand.
;  * Pairwise branch: sum_ij w_p[i,j] <e_i,e_j> over the fragment pairs q <= p and the R pairs, one 16x16x32 MFMA per pair and
;    sample, weighted in f32 by U = w_p + w_p^T (w_p itself on the diagonal pairs).  Fragments 0-4 stay in registers.
;  * MLP: 16x16x32 MFMAs, wave w owns 32 hidden units for all 64 samples; accumulators start from b1; tanh-GELU and the w2 dot in f32.
;  * w1 (transposed into MFMA operand order) and U are built once per launch by 56 of the workgroups and handed over through d_ws:
;    write-through stores, s_waitcnt, barrier, then a tag word per producer (the 5.12 us tick of its start, so words left by an earlier
;    launch never match) and an arrival count in d_debug; readers check the tags (bounded re-poll also accepts the count) before loading.
""".rstrip().split("\n")

def build(**kw):
    cfg = dict(stamps=False, codepf=True, stamp_stages=[-1, 1, 4], poll=14, npre=0, g1pre=4, plag=4, pend=[4,4,4,4,0], p0off=1, gend=[4,4,4,4,5], pmap=True, tags=True, order="u")
    cfg.update(kw)
    m = gen_main(cfg)
    sys.stderr.write(f"instructions {sum(m.counts.values())}, padded wait states {m.nops}, waits {m.counts.get('s_waitcnt')}\n")
    return file_text([f"; @launch grid=(256,1,1) block=(256,1,1) lds={LDS_SIZE}"] + NOTES, kernel(KN, m), [descriptor(KN, 512, 256)])
if __name__ == "__main__":
    out = sys.argv[1]; kw = eval("dict(" + (sys.argv[2] if len(sys.argv) > 2 else "") + ")")
    open(out, "w").write(build(**kw))
```

```python
import sys, struct
from collections import deque
from asmlib import HEADER, KN, descriptor, file_text
from emit import Emit

SS = 1040; WREG = 16 * SS; BUF = 64 * SS; U_BASE = 2 * BUF; R_BASE = U_BASE + 12 * 1024; W2_LDS = U_BASE + 28 * 1024
MP_LDS = W2_LDS + 256; PP_LDS = MP_LDS + 1024; LDS_SIZE = PP_LDS + 256
WSTRIDE = 205824; WS_U = 4 * WSTRIDE; WS_TAG = WS_U + 24 * 1024; WS_SIZE = WS_TAG + 16 * 128
NPROD_W = 50; NPROD = 56
STAMP_OFF = 128 << 20
def f2u(x): return struct.unpack("<I", struct.pack("<f", x))[0]
LOG2E = 1.4426950408889634
C1 = 2 * 0.7978845608028654
K1 = -C1 * LOG2E; K2 = -C1 * 0.044715 * LOG2E

def q4(p, b): return f"{p}[{b}:{b+3}]"
def E(s, q): return q4("a", (q * 16 + s) * 4) if q < 4 else q4("v", 192 + 4 * s)
def T5(s): return q4("v", (12, 32)[s & 1])
def frag(s, q): return E(s, q) if q < 5 else T5(s)
def Rq(g): return q4("v", 48 + 4 * g)
def Dq(n): return 36 + 4 * (n % 3)
NU = 6
def Uq(T): return 64 + 4 * (T % NU)
def U1(p): return 88 + (p & 3)
URR = 12
def Aq(f, t): return 96 + 16 * (f & 1) + 4 * t
def Y(s): return 1 if 4 <= (s & 15) < 12 else 0
def Wq(j): return 128 + 4 * (j % 8)
ACC = 160
def PACC(s): return 16 + s
def IREG(p, m):
    if p < 4: return 192 + 4 * m + p
    return (252 if p == 4 else 92) + m
IR = 32
def Tidx(q, p): return p * (p + 1) // 2 + q
def X(j): return (-(j >> 2)) & 3
vCOFF, vWOFF, vA0, vCOFF1, vH, vP0, vP1, vU, vS = 1, 4, 5, 6, 7, 8, 9, 10, 11
vPOLL, vPADR, vB2, vCNT, vPF = 112, 120, 121, 122, 123
sW, sW1K, sIDX, sWOFF, sWREG, sT, sSEL, sB2, sWOFF2, sPG, sNOW, sBASE, sUO, sBW = 40, 41, 42, 43, 44, 45, 58, 59, 62, 63, 66, 67, 73, 75

def srd(e, d, b, nbytes):
    e(f"s_mov_b32 s{d}, s{b}\ns_and_b32 s{d+1}, s{b+1}, 0xffff\ns_mov_b32 s{d+2}, {nbytes}\ns_mov_b32 s{d+3}, 0x00020000")

def prod_issue_w(e):
    srd(e, 36, 10, 819200)
    e("v_lshrrev_b32 v96, 4, v0\nv_lshlrev_b32 v96, 11, v96\nv_and_b32 v97, 15, v0\nv_lshl_add_u32 v96, v97, 3, v96")
    e("s_lshl_b32 s48, s47, 13\ns_lshl_b32 s49, s46, 7\ns_add_u32 s48, s48, s49")
    for x in range(8):
        e(f"buffer_load_dwordx2 v[{128+2*x}:{129+2*x}], v96, s[36:39], s48 offen offset:{256*x}", tag=("raw", x))
def prod_finish_w(e):
    e(f"s_mul_i32 s48, s46, {2*WSTRIDE}\ns_lshl_b32 s49, s47, 11\ns_add_u32 s48, s48, s49\ns_add_u32 s49, s48, {WSTRIDE}\nv_lshlrev_b32 v97, 4, v0")
    e("s_mov_b32 s50, 0x05040100\ns_mov_b32 s51, 0x07060302")
    e.need(("raw", 7))
    for y in range(4):
        for j in range(4):
            e(f"v_perm_b32 v{100+4*y+j}, v{128+4*j+2+(y>>1)}, v{128+4*j+(y>>1)}, s{50+(y&1)}")
        e(f"buffer_store_dwordx4 {q4('v',100+4*y)}, v97, s[32:35], s{48+(y>>1)} offen offset:{1024*(y&1)} sc0 sc1", tag="st")
def prod_u(e):
    srd(e, 36, 8, 20000)
    e("v_and_b32 v94, 15, v0\nv_lshrrev_b32 v95, 4, v0")
    e("s_cmp_ge_u32 s48, 3\ns_cbranch_scc1 L_um\ns_cmp_ge_u32 s48, 1\ns_cbranch_scc1 L_u1")
    e(f"v_lshrrev_b32 v96, 2, v94\nv_mul_u32_u24 v98, 200, v95\nv_lshl_add_u32 v98, v96, 1, v98\nv_add_u32 v98, {2 * (96 * 100 + 96)}, v98\nbuffer_load_ushort v128, v98, s[36:39], 0 offen")
    e("v_and_b32 v96, 3, v0\ns_waitcnt vmcnt(0)\nv_lshlrev_b32 v128, 16, v128")
    for t in range(4): e(f"v_cmp_eq_u32 vcc, {t}, v96\nv_cndmask_b32 v{100+t}, 0, v128, vcc")
    e("s_branch L_ust")
    e.label("L_u1")
    e("s_sub_u32 s46, s48, 1\ns_lshl_b32 s46, s46, 6     ; 16 * first q")
    e(f"v_add_u32 v96, s46, v94\nv_mul_u32_u24 v98, 200, v95\nv_lshl_add_u32 v98, v96, 1, v98\nv_add_u32 v98, {2*96*100}, v98")
    e(f"v_mul_u32_u24 v99, 200, v96\nv_lshl_add_u32 v99, v95, 1, v99\nv_add_u32 v99, {2*96}, v99\nv_add_u32 v97, 6400, v99")
    for k in range(4): e(f"buffer_load_ushort v{128+k}, v98, s[36:39], 0 offen offset:{32*k}")
    for k in range(4): e(f"buffer_load_ushort v{132+k}, v{99 if k < 2 else 97}, s[36:39], 0 offen offset:{3200*(k&1)}")
    e("s_waitcnt vmcnt(0)")
    for k in range(8): e(f"v_lshlrev_b32 v{128+k}, 16, v{128+k}")
    for k in range(4): e(f"v_add_f32 v{100+k}, v{128+k}, v{132+k}")
    e("s_branch L_ust")
    e.label("L_um")
    e("s_sub_u32 s46, s48, 3\ns_mov_b32 s47, 0")
    for k in range(5):
        e("s_cmp_gt_u32 s46, s47\ns_cselect_b32 s49, 1, 0\ns_add_u32 s47, s47, s49\ns_mul_i32 s49, s49, s47\ns_sub_u32 s46, s46, s49")
    e("s_lshl_b32 s49, s47, 4\nv_add_u32 v96, s49, v94         ; column j")
    e("s_lshl_b32 s49, s46, 4\nv_lshl_add_u32 v97, v95, 2, s49")
    e("v_mul_u32_u24 v98, 200, v97\nv_lshl_add_u32 v98, v96, 1, v98")
    e("v_mul_u32_u24 v99, 200, v96\nv_lshl_add_u32 v99, v97, 1, v99")
    e("s_cmp_eq_u32 s46, s47\ns_cselect_b32 s49, 0x100000, 0\nv_add_u32 v99, s49, v99   ; diagonal tile: no transposed part")
    for r in range(4): e(f"buffer_load_ushort v{128+r}, v98, s[36:39], 0 offen offset:{200*r}")
    e("buffer_load_dwordx2 v[132:133], v99, s[36:39], 0 offen")
    e("s_waitcnt vmcnt(0)")
    for r in range(4): e(f"v_lshlrev_b32 v{128+r}, 16, v{128+r}")
    e("v_lshlrev_b32 v134, 16, v132\nv_and_b32 v135, 0xffff0000, v132\nv_lshlrev_b32 v136, 16, v133\nv_and_b32 v137, 0xffff0000, v133")
    for r in range(4): e(f"v_add_f32 v{100+r}, v{128+r}, v{134+r}")
    e.label("L_ust")
    e(f"s_lshl_b32 s48, s48, 10\ns_add_u32 s48, s48, {WS_U}\nv_lshlrev_b32 v97, 4, v0")
    e("buffer_store_dwordx4 v[100:103], v97, s[32:35], s48 offen sc0 sc1")

def stamp(e, cfg, k):
    if cfg["stamps"]: e(f"{'s_memtime' if cfg['stamps']==2 else 's_memrealtime'} s[{80+2*k}:{81+2*k}]")

def gen_main(cfg):
    e = Emit()
    sst = cfg.get("sst", []); poll = cfg["poll"]; npre = cfg["npre"]; g1pre = cfg["g1pre"]; TSH = 2
    assert 1 <= poll <= 16 and npre <= g1pre
    e.label("L_start")
    e("s_cmp_ge_u32 s2, 256\ns_cbranch_scc1 L_end")
    e("s_load_dwordx16 s[4:19], s[0:1], 0\ns_load_dwordx4 s[20:23], s[0:1], 64")
    if cfg["tags"]: e("s_memrealtime s[64:65]")
    stamp(e, cfg, 0)
    e(f"v_lshrrev_b32 v9, 6, v0\nv_and_b32 v0, 63, v0\nv_readfirstlane_b32 s{sW}, v9\nv_lshlrev_b32 v{vWOFF}, 4, v0")
    e.protect("v0", f"v{vWOFF}", f"s{sW}", "s2", *[f"s{k}" for k in range(4, 24)])
    if cfg["codepf"]:
        e("s_getpc_b64 s[46:47]")
        e.label("L_pc")
        e("s_sub_u32 s46, s46, L_pc-L_start\ns_subb_u32 s47, s47, 0")
        e(f"s_lshr_b32 s48, s2, 3\ns_and_b32 s48, s48, 31\ns_lshl_b32 s48, s48, 10\ns_lshl_b32 s49, s{sW}, 8\ns_add_u32 s48, s48, s49\ns_sub_u32 s48, s48, 1280")
        e(f"s_lshl_b32 s49, s{sW}, 9\nv_lshl_add_u32 v2, v0, 7, s49\nv_lshl_add_u32 v3, v0, 7, s48\ns_mul_i32 s49, s{sW}, 768\ns_add_u32 s49, s49, L_prod-L_start-512\nv_lshl_add_u32 v5, v0, 7, s49")
        e("v_cmp_gt_u32 vcc, 4, v0\nv_cndmask_b32 v5, v5, v2, vcc\nv_cmp_gt_u32 vcc, 10, v0\nv_cndmask_b32 v5, v3, v5, vcc\nv_min_u32 v5, L_codeend-L_start-4, v5")
        e(f"s_mov_b64 exec, 0xfff\nglobal_load_dword v{vPF}, v5, s[46:47]\ns_mov_b64 exec, -1")
    e(f"s_mul_i32 s{sWREG}, s{sW}, {WREG}\ns_lshl_b32 s{sIDX}, s2, 6\ns_lshl_b32 s{sT}, s{sW}, 4\ns_add_u32 s{sIDX}, s{sIDX}, s{sT}\ns_mul_i32 s{sIDX}, s{sIDX}, 400")
    e(f"s_add_u32 m0, s{sWREG}, {BUF}\ns_mov_b32 s26, 6553600\ns_mov_b32 s27, 0x00020000\ns_add_u32 s{sT}, s{sIDX}, 4096")
    e.protect(f"s{sWREG}", f"s{sIDX}", "s26", "s27")
    if cfg["pmap"]: e(f"s_lshr_b32 s{sPG}, s2, 3\ns_lshl_b32 s{sPG}, s{sPG}, 2\ns_and_b32 s46, s2, 3\ns_or_b32 s{sPG}, s{sPG}, s46\ns_and_b32 s46, s2, 4\ns_lshl_b32 s46, s46, 6\ns_or_b32 s{sPG}, s{sPG}, s46")
    else: e(f"s_mov_b32 s{sPG}, s2")
    e(f"s_cmp_lt_u32 s{sPG}, {NPROD}")
    e("s_waitcnt lgkmcnt(0)")
    e("s_cbranch_scc1 L_prod")
    def idx_dma(setup):
        if setup: e(f"s_add_u32 m0, s{sWREG}, {BUF}\ns_add_u32 s{sT}, s{sIDX}, 4096")
        e("s_mov_b32 s24, s4\ns_and_b32 s25, s5, 0xffff")
        for k in range(7):
            if k == 4: e("s_add_u32 m0, m0, 4096")
            if k == 6: e("s_mov_b64 exec, 0xffff")
            e(f"buffer_load_dwordx4 v{vWOFF}, s[24:27], s{sIDX if k < 4 else sT} offen offset:{1024*(k%4)} nt lds", tag="idx")
        e("s_mov_b64 exec, -1")
    shifted = set(); gcount = [0]
    def Ird(p):
        for m in range(4): e(f"ds_read_b32 v{IREG(p,m)}, v5 offset:{1600*m+64*p}", tag=("I", p, m))
    def shift_idx(p, m):
        if (p, m) in shifted: return
        shifted.add((p, m)); e.need(("I", p, m))
        r = IR if p == "R" else IREG(p, m)
        e(f"v_lshlrev_b32 v{r}, 6, v{r}")
    def G(p, s):
        t = 2 + (gcount[0] & 1); gcount[0] += 1
        if p == "R":
            shift_idx("R", 0); r = IR; j = s
            e(f"s_add_u32 m0, s74, {s*1024}")
        else:
            shift_idx(p, s >> 2); r = IREG(p, s >> 2); j = s & 3
            e(f"s_add_u32 m0, s{sWREG}, {(p&1)*BUF + s*SS}")
        c = vCOFF1 if (p != "R" and Y(s)) else vCOFF
        e(f"v_add_u32_dpp v{t}, v{r}, v{c} quad_perm:[{j},{j},{j},{j}] row_mask:0xf bank_mask:0xf")
        e(f"buffer_load_dwordx4 v{t}, s[28:31], 0 offen lds", tag=("G", p, s))
    def Wtxt(j): return f"buffer_load_dwordx4 {q4('v', Wq(j))}, v{vWOFF}, s[32:35], s{(sWOFF, sWOFF2)[(j>>2)&1]} offen offset:{(j%4)*1024} sc1"
    def Winc(j):
        r = (sWOFF, sWOFF2)[(j >> 2) & 1]
        return f"s_sub_u32 s{r}, s{r}, {192*1024}" if j < 8 else f"s_add_u32 s{r}, s{r}, 8192"
    def W(j):
        e(Wtxt(j), tag=("W", j))
        if j % 4 == 3: e(Winc(j))
    def Utxt(k): return [f"s_add_u32 m0, s{sW1K}, {U_BASE + 4096*k}", f"buffer_load_dwordx4 v{vWOFF}, s[32:35], s{sUO} offen sc1 lds", f"s_add_u32 s{sUO}, s{sUO}, 4096"]
    tags = cfg["tags"]
    polltxt = f"buffer_load_dword v{vPOLL}, v{vPADR}, s[32:35], 0 offen sc1" if tags else f"buffer_load_dword v{vPOLL}, v{vPADR}, s[68:71], 0 offen sc1"
    keep = [f"v{vCOFF}", f"v{vCOFF1}", f"v{vPADR}"] + [f"s{k}" for k in list(range(24, 26)) + list(range(28, 36)) + list(range(68, 72))]
    def opening(x):
        shifted.clear(); gcount[0] = 0
        srd(e, 28, 6, 6400000)
        e("v_and_b32 v2, 3, v0\nv_lshrrev_b32 v3, 4, v0")
        e(f"v_sub_u32 v{vCOFF}, 0, v3\nv_and_b32 v{vCOFF}, 3, v{vCOFF}\nv_xor_b32 v{vCOFF}, v{vCOFF}, v2\nv_lshlrev_b32 v{vCOFF}, 4, v{vCOFF}\nv_xor_b32 v{vCOFF1}, 16, v{vCOFF}")
        e(f"v_mul_u32_u24 v5, 400, v2\nv_lshrrev_b32 v8, 2, v0\nv_lshl_add_u32 v5, v8, 2, v5\ns_add_u32 s{sT}, s{sWREG}, {BUF}\nv_add_u32 v5, s{sT}, v5")
        e(f"v_mul_u32_u24 v7, 1600, v2\nv_and_b32 v8, 3, v8\nv_mul_u32_u24 v8, 400, v8\nv_add_u32 v7, v7, v8\nv_lshl_add_u32 v7, v3, 2, v7\nv_add_u32 v7, s{sT}, v7")
        e(f"s_lshl_b32 s74, s{sW}, 12\ns_add_u32 s74, s74, {R_BASE}")
        if not x: e.need("idx")
        e(f"ds_read_b32 v{IR}, v7 offset:384", tag=("I", "R", 0))
        Ird(0); Ird(1); Ird(2)
        if not sst: stamp(e, cfg, 1)
        for g in range(4): G("R", g)
        for s in range(16):
            G(0, s)
            if s == 0:
                if not x: srd(e, 32, 22, WS_SIZE); srd(e, 68, 20, 256)
                if not tags: e(f"s_and_b32 s{sT}, s2, 1\ns_lshl_b32 s{sT}, s{sT}, 7\nv_mov_b32 v{vPADR}, s{sT}")
                if tags: e(f"s_lshr_b64 s[64:65], s[64:65], 9\ns_mov_b32 s{sNOW}, s64")
                if tags: e(f"v_min_u32 v{vPADR}, {NPROD-1}, v0\nv_lshrrev_b32 v8, {TSH}, v{vPADR}\nv_and_b32 v{vPADR}, {(1<<TSH)-1}, v{vPADR}\nv_lshlrev_b32 v{vPADR}, 2, v{vPADR}\nv_lshl_add_u32 v{vPADR}, v8, 7, v{vPADR}\nv_add_u32 v{vPADR}, {WS_TAG}, v{vPADR}")
                e.protect("v5", *keep)
                e.need(("I", 2, 3)); Ird(3); Ird(4); Ird(5)
            if s + 1 == poll:
                e(f"s_cmp_lg_u32 s{sW}, 0\ns_cbranch_scc1 L_np{x}")
                e.uncounted(polltxt)
                e.label(f"L_np{x}")
        e(f"s_lshl_b32 s{sW1K}, s{sW}, 10\ns_mul_i32 s{sWOFF}, s{sW}, {WSTRIDE}\ns_add_u32 s{sWOFF}, s{sWOFF}, {192*1024}\ns_add_u32 s{sWOFF2}, s{sWOFF}, 4096\ns_add_u32 s{sUO}, s{sW1K}, {WS_U}")
        e(f"v_lshrrev_b32 v2, 4, v0\nv_lshlrev_b32 v2, 5, v2\ns_lshr_b32 s{sT}, s{sW}, 1\ns_lshl_b32 s{sT}, s{sT}, 7\ns_and_b32 s{sBW}, s{sW}, 1\ns_lshl_b32 s{sBW}, s{sBW}, 2\ns_add_u32 s{sBW}, s{sBW}, s{sT}\nv_add_u32 v2, s{sBW}, v2")
        srd(e, 36, 12, 256)
        for r in range(4): e(f"buffer_load_dword v{96+r}, v2, s[36:39], 0 offen offset:{8*r}", tag="b1")
        srd(e, 36, 16, 2)
        e(f"buffer_load_ushort v{vB2}, off, s[36:39], 0", tag="b2")
        srd(e, 36, 14, 256)
        e(f"s_mov_b32 m0, {W2_LDS}\nv_lshlrev_b32 v2, 2, v0\nbuffer_load_dword v2, s[36:39], 0 offen lds", tag="w2")
        if x: e("s_branch L_join")
    idx_dma(False)
    opening("")
    e.label("L_join")
    e("s_nop 1")
    e.protect(f"s{sW1K}", f"s{sBW}", f"v{vB2}", f"v{vPF}", f"v{vPOLL}", *[f"v{96+k}" for k in range(4)])
    e(f"v_lshrrev_b32 v3, 4, v0\nv_lshlrev_b32 v{vH}, 4, v3      ; chunk * 16")
    e(f"v_bfe_u32 v2, v0, 2, 2\nv_sub_u32 v9, 0, v2\nv_and_b32 v9, 3, v9\nv_xor_b32 v9, v9, v3\nv_and_b32 v{vP0}, 15, v0\nv_lshlrev_b32 v{vP0}, 6, v{vP0}\nv_lshl_add_u32 v{vP0}, v9, 4, v{vP0}")
    e(f"v_add_u32 v33, s74, v{vP0}")
    e(f"v_add_u32 v{vP0}, s{sWREG}, v{vP0}\nv_add_u32 v{vP1}, {BUF}, v{vP0}")
    e(f"v_bfe_u32 v{vS}, v0, 2, 2\nv_lshlrev_b32 v{vS}, 10, v{vS}\nv_and_b32 v2, 3, v0\nv_lshl_add_u32 v{vS}, v2, 6, v{vS}\nv_add_u32 v{vS}, {R_BASE}, v{vS}")
    e(f"v_add_u32 v{vU}, {U_BASE}, v{vWOFF}")
    e.protect(f"v{vU}", "v33")
    for s in range(16): e(f"v_mov_b32 v{PACC(s)}, 0")
    for p in range(1, 6):
        for m in range(4): shift_idx(p, m)
    for s in range(npre): G(1, s)
    e.need(("G", "R", 3))
    e(f"s_cmp_lg_u32 s{sW}, 0\ns_cbranch_scc1 L_ready")
    e.release(f"v{vPOLL}")
    def tagcheck(span):
        e(f"v_subrev_u32 v{vPOLL}, s{sBASE}, v{vPOLL}\nv_cmp_lt_u32 vcc, {span}, v{vPOLL}\ns_nop 0\ns_cbranch_vccz L_ready")
    if tags:
        e(f"s_sub_u32 s{sBASE}, s{sNOW}, 2")
        e(f"s_waitcnt vmcnt({16 - poll + 6 + npre})")
        tagcheck(4)
        e(f"s_mov_b32 s{sT}, 0")
        e.label("L_spin")
        e.uncounted(polltxt)
        e.uncounted(f"buffer_load_dword v{vCNT}, off, s[68:71], 0 sc1")
        e(f"s_memrealtime s[64:65]\ns_add_u32 s{sT}, s{sT}, 1\ns_waitcnt vmcnt(0) lgkmcnt(0)\nv_cmp_le_u32 vcc, {NPROD}, v{vCNT}\ns_lshr_b64 s[64:65], s[64:65], 9\ns_cbranch_vccnz L_ready")
        e(f"s_sub_u32 s72, s64, s{sBASE}\ns_add_u32 s72, s72, 1")
        tagcheck("s72")
    else:
        e(f"s_waitcnt vmcnt({16 - poll + 6 + npre})")
        e(f"v_cmp_le_u32 vcc, {NPROD}, v{vPOLL}\ns_nop 0\ns_cbranch_vccnz L_ready")
        e(f"s_mov_b32 s{sT}, 0")
        e.label("L_spin")
        e.uncounted(polltxt)
        e(f"s_add_u32 s{sT}, s{sT}, 1\ns_waitcnt vmcnt(0)\nv_cmp_le_u32 vcc, {NPROD}, v{vPOLL}\ns_nop 0\ns_cbranch_vccnz L_ready")
    e(f"s_sleep 8\ns_cmp_lt_u32 s{sT}, 0x20000\ns_cbranch_scc1 L_spin")
    e.label("L_ready")
    e("s_barrier")
    if not sst: stamp(e, cfg, 2)
    for j in range(4): W(j)
    for k in range(3):
        a, b, c = Utxt(k); e(a); e(b, tag="U1"); e(c)
    for j in range(4, 8): W(j)
    for g in range(4): e(f"ds_read_b128 {Rq(g)}, v33 offset:{g*1024}", tag=("R", g))
    for s in range(npre, g1pre): G(1, s)
    e.need("b1", "b2", "w2")
    e.release(f"v{vB2}", f"v{vPF}", f"v{vPADR}", "v5", "v33")
    e(f"v_lshlrev_b32 v{vB2}, 16, v{vB2}")
    for r in range(4):
        for t in range(4): e(f"v_lshlrev_b32 v{ACC+4*t+r}, 16, v{96+r}\nv_and_b32 v{ACC+16+4*t+r}, 0xffff0000, v{96+r}")
    e(f"v_readfirstlane_b32 s{sB2}, v{vB2}")
    e.release(*[f"v{96+k}" for k in range(4)])
    e.protect(f"s{sB2}", *[f"v{48+k}" for k in range(16)])
    if cfg["stamps"] and -2 in cfg["stamp_stages"]: stamp(e, cfg, 3 + cfg["stamp_stages"].index(-2))

    stage_of = lambda f: -1 if f < 4 else (f - 4) // 16
    last_of = {p: 4 + 16 * p + 15 for p in range(-1, 5)}; last_of[-1] = 3
    bar_at = {f: p for p, f in last_of.items()}
    scal, mem, valu, fm, gq = deque(), deque(), deque(), deque(), deque()
    slot = [0]; tile_n = [0]; nextU = [0]; deadU = set(); gstate = [None]; barriers_done = set()
    def Axad(f):
        if f < 4: x = X(4 * f)
        else:
            j = (f - 4) % 16
            if j % 4: return []
            x = X(j)
        return [f"v_xad_u32 v{vA0}, v{vH}, {x<<4}, v{vS}"]
    def Ard(f):
        off = (lambda t: t * 4096 + f * 256) if f < 4 else (lambda t: t * 16 * SS + ((f - 4) % 16) * 64)
        return [(f"ds_read_b128 {q4('v', Aq(f,t))}, v{vA0} offset:{off(t)}", ("A", f, t)) for t in range(4)]
    def Prd(p, s):
        r = vP0 + (p & 1)
        flip = [(f"v_xor_b32 v{r}, 16, v{r}", None)] if s in (4, 12) else []
        return flip + [(f"ds_read_b128 {frag(s,p)}, v{r} offset:{s*SS}", ("P", p, s))]
    def pump_U():
        while nextU[0] < 21 and (nextU[0] < NU or (nextU[0] - NU) in deadU) and (-1 in barriers_done) and (nextU[0] < 9 or 1 in barriers_done):
            T = nextU[0]; mem.append((f"ds_read_b128 {q4('v', Uq(T))}, v{vU} offset:{(3+T)*1024}", ("U", T))); nextU[0] += 1
    def pump_G():
        if gstate[0] is None and gq:
            p, s = gq.popleft()
            if p == "U":
                a, b, c = Utxt(s)
                st = dict(left=1, load=(b, ("U2", s)), after=c)
                scal.append((a, lambda: mark(st), slot[0]))
            else:
                t = 2 + (gcount[0] & 1); gcount[0] += 1; j = s & 3
                st = dict(left=2, load=(f"buffer_load_dwordx4 v{t}, s[28:31], 0 offen lds", ("G", p, s)), after=None)
                scal.append((f"s_add_u32 m0, s{sWREG}, {(p&1)*BUF + s*SS}", lambda: mark(st), slot[0]))
                valu.append((f"v_add_u32_dpp v{t}, v{IREG(p, s>>2)}, v{vCOFF1 if Y(s) else vCOFF} quad_perm:[{j},{j},{j},{j}] row_mask:0xf bank_mask:0xf", lambda: mark(st)))
            gstate[0] = st
    def mark(st):
        st["left"] -= 1
        if st["left"] == 0: st["ready_slot"] = slot[0] + 1
    def emit_scal(upto=1 << 30):
        for it in scal:
            if it[2] <= upto:
                scal.remove(it); e(it[0])
                if it[1]: it[1]()
                return True
        return False
    def emit_valu():
        it = valu.popleft()
        if isinstance(it, str): e(it)
        else:
            e(it[0]); it[1]()
    def emit_mem():
        it = mem.popleft()
        e(it[0], tag=it[1])
        return 0.8 if it[0].startswith("ds_") else 0.3
    def emit_gload():
        st = gstate[0]
        if st is not None and st["left"] == 0 and st["ready_slot"] <= slot[0]:
            e(st["load"][0], tag=st["load"][1])
            if st["after"]: e(st["after"])
            gstate[0] = None; pump_G(); return 0.75
        return 0
    def force_G(tag):
        while tag not in e.tags:
            assert gstate[0] is not None, tag
            st = gstate[0]
            while st["left"]:
                if scal: emit_scal()
                if st["left"] and valu: emit_valu()
            st["ready_slot"] = slot[0]; emit_gload()
    def ensure(tg):
        for t in tg:
            if t[0] in ("G", "U2"): force_G(t)
            while t not in e.tags: emit_mem()
    def fm_ready(): return fm and (e.pos - fm[0]["pos"] - 1) >= 8
    def emit_fm():
        t = fm[0]; acc, d, u = t["ops"].pop(0)
        if t["need"]: ensure([t["need"]]); e.need(t["need"]); t["need"] = None
        if not cfg.get("nofma"): e(f"v_fmac_f32 v{acc}, v{d}, v{u}")
        if not t["ops"]:
            fm.popleft()
            if t["done"]: t["done"]()
    def flush_fm(upto):
        while fm and fm[0]["n"] <= upto:
            if not fm_ready() and valu: emit_valu()
            else: emit_fm()
    extra = deque()
    red = []
    P = PACC
    for s in range(8): red += [f"v_permlane32_swap_b32 v{P(s)}, v{P(s+8)}"]
    for s in range(8): red += [f"v_add_f32 v{P(s)}, v{P(s)}, v{P(s+8)}"]
    for s in range(4): red += [f"v_permlane16_swap_b32 v{P(s)}, v{P(s+4)}"]
    for s in range(4): red += [f"v_add_f32 v{P(s)}, v{P(s)}, v{P(s+4)}"]
    for s in range(2): red += [f"v_add_f32_dpp v{P(s+4)}, v{P(s)}, v{P(s)} row_ror:8 row_mask:0xf bank_mask:0xf"]
    for s in range(2): red += [f"v_add_f32_dpp v{P(s+4)}, v{P(s+2)}, v{P(s+2)} row_ror:8 row_mask:0xf bank_mask:0xc"]
    red += [f"v_add_f32_dpp v{P(0)}, v{P(4)}, v{P(4)} row_half_mirror row_mask:0xf bank_mask:0xf"]
    red += [f"v_and_b32 v3, 60, v0", f"v_add_f32_dpp v{P(0)}, v{P(5)}, v{P(5)} row_half_mirror row_mask:0xf bank_mask:0xa"]
    red += [f"s_lshl_b32 s{sT}, s{sW}, 6", f"s_add_u32 s{sT}, s{sT}, {PP_LDS}"]
    red += [f"v_add_f32_dpp v{P(0)}, v{P(0)}, v{P(0)} quad_perm:[1,0,3,2] row_mask:0xf bank_mask:0xf", f"v_add_u32 v3, s{sT}, v3"]
    red += [f"s_add_u32 s{sT}, s{sBW}, {W2_LDS}", "v_lshrrev_b32 v2, 4, v0", f"v_lshl_add_u32 v2, v2, 5, s{sT}", f"v_add_f32_dpp v{P(0)}, v{P(0)}, v{P(0)} quad_perm:[2,3,0,1] row_mask:0xf bank_mask:0xf"]
    W2R = 64
    red += [f"ds_write_b32 v3, v{P(0)}"]
    red += [(f"ds_read_b32 v{W2R+r}, v2 offset:{8*r}", ("w2r", r)) for r in range(4)]
    red += [f"s_mov_b32 s60, {hex(f2u(K2))}", f"s_mov_b32 s61, {hex(f2u(K2))}", f"v_mov_b32 v36, {hex(f2u(K1))}", f"v_mov_b32 v37, {hex(f2u(K1))}", "v_mov_b32 v38, 1.0", "v_mov_b32 v39, 1.0"]
    red += [f"s_mov_b32 s36, s18", "s_and_b32 s37, s19, 0xffff", "s_mov_b32 s38, 32768", "s_mov_b32 s39, 0x00020000"]
    red += [("need", ("w2r", 3))]
    for r in range(4): red += [f"v_lshlrev_b32 v{68+r}, 16, v{W2R+r}", f"v_and_b32 v{72+r}, 0xffff0000, v{W2R+r}"]
    def emit_extra():
        it = extra.popleft()
        if isinstance(it, str): e(it)
        elif it[0] == "need": e.need(it[1])
        else: e(it[0], tag=it[1])

    LAG = cfg["plag"]; GEND = cfg["gend"]
    units = [(4 + cfg["p0off"] + s * (15 - cfg["p0off"]) / 16.0, 0, s) for s in range(16)]
    PEND = cfg["pend"] if isinstance(cfg["pend"], (list, tuple)) else [cfg["pend"]] * 5
    tprev = 0
    for p in range(1, 6):
        t0 = max(4 + 16 * (p - 1) + LAG, tprev); t1 = 4 + 16 * p + PEND[p - 1]
        units += [(t0 + s * (t1 - t0) / 16.0, p, s) for s in range(16)]; tprev = t1
    units.sort()
    ops = []
    for f in range(100):
        for k in range(8):
            if cfg["order"] == "u": u, tt = k >> 2, (k if k < 4 else 7 - k)
            else: u, tt = (1 ^ (k & 1) ^ ((k >> 1) & 1)), k >> 1
            ops.append(dict(t=f + k / 8.0 - 1e-4, kind="M", f=f, k=k, u=u, tt=tt))
    ntiles = 0
    for u, (t0, p, s) in enumerate(units):
        tl = [("N", k) for k in range(p + 1)] + [("R", p)] + ([("RR", s >> 2)] if p == 0 and s % 4 == 0 else [])
        t1 = units[u + 1][0] if u + 1 < len(units) else t0 + 1
        for k, x in enumerate(tl): ops.append(dict(t=t0 + (k + 0.5) * (t1 - t0) / len(tl), kind="P", u=u, first=(k == 0), tile=x, p=p, s=s))
        ntiles += len(tl)
    ops.sort(key=lambda o: o["t"])
    gt = []
    for p in range(1, 6):
        for s in range(16):
            if p == 1 and s < g1pre: continue
            ge = GEND[p - 1] if isinstance(GEND, (list, tuple)) else GEND
            gb = cfg["gburst"]
            t = 4 + 16 * (p - 1) - 1 + (s // gb * gb) * (16 - ge - (gb - 1) * 0.25) / (16.0 - gb) if gb < 16 else 4 + 16 * (p - 1) - 1
            if p == 1: t = (s - g1pre) * (19 - ge) / max(1.0, 15.0 - g1pre)
            gt.append((t, p, s))
    for k in range(3, 6): gt.append((19 + 2.1 + 3 * (k - 3), "U", k))
    gt = deque(sorted(gt, key=lambda x: x[0]))
    for o in ops:
        if o["kind"] == "M":
            f, k8 = o["f"], o["k"]
            if cfg["order"] == "u": o["needs"] = {0: [("A", f, 1), ("W", 2 * f)], 2: [("A", f, 3)], 4: [("W", 2 * f + 1)]}.get(k8, [])
            else: o["needs"] = {0: [("A", f, 1), ("W", 2 * f + 1)], 4: [("A", f, 3)]}.get(k8, [])
        else:
            o["needs"] = [("P", o["p"], o["s"])] if o["first"] else []
            if o["tile"][0] in ("R", "RR"): o["needs"] = o["needs"] + [("R", o["s"] >> 2)]
    for x in Axad(0): e(x)
    mem.extend(Ard(0))
    while mem: emit_mem()
    for x in Axad(1): e(x)
    red_queued = False
    def released(g):
        if g[1] == "U": return 0 in barriers_done
        return g[1] < 2 or (g[1] - 2) in barriers_done
    for k, o in enumerate(ops):
        slot[0] = k
        ensure(o["needs"]); e.need(*o["needs"])
        gate = []
        if o["kind"] == "M":
            f, k8, u, tt = o["f"], o["k"], o["u"], o["tt"]
            if k8 == 0 and f in sst: stamp(e, cfg, 1 + sst.index(f))
            c = q4("v", ACC + 16 * u + 4 * tt)
            if not cfg.get("nom"): e(f"v_mfma_f32_16x16x32_bf16 {c}, {q4('v', Wq(2*f+u))}, {q4('v', Aq(f,tt))}, {c}")
            j = 2 * f + u + 8
            if k8 in ((3, 7) if cfg["order"] == "u" else (6, 7)) and j < 200:
                if j % 4 == 0:
                    for it in [x for x in scal if x[0] == Winc(j)]: scal.remove(it); e(it[0])
                mem.appendleft((Wtxt(j), ("W", j)))
                if j % 4 == 3: scal.append((Winc(j), None, k + 1))
            if k8 == 0 and f < 99:
                while any(isinstance(x, str) for x in valu): emit_valu()
                assert f not in bar_at or bar_at[f] in barriers_done
                mem.extend(Ard(f + 1))
            if k8 == 4 and f < 98:
                while any(m[1] and m[1][0] == "A" for m in mem): emit_mem()
                if f + 2 == 4:
                    valu.extend([f"v_and_b32 v{vS}, 15, v0", f"v_add_u32 v{vA0}, 4, v{vS}", f"v_and_b32 v{vA0}, 8, v{vA0}", f"v_lshlrev_b32 v{vA0}, 1, v{vA0}",
                                 f"v_xor_b32 v{vH}, v{vH}, v{vA0}", f"v_mul_u32_u24 v{vS}, {SS}, v{vS}"])
                elif f + 2 > 4 and (f + 2 - 4) % 16 == 0: valu.append(f"{'v_add_u32' if stage_of(f) % 2 == 0 else 'v_subrev_u32'} v{vS}, {BUF}, v{vS}")
                valu.extend(Axad(f + 2))
            budget = 2
        else:
            n = tile_n[0]; flush_fm(n - 3)
            q, s = o["p"], o["s"]; kind, x = o["tile"]; D = Dq(n)
            if kind == "N":
                T = Tidx(x, q); A, B = frag(s, x), frag(s, q)
                item = dict(ops=[(PACC(s), D + r, Uq(T) + r) for r in range(4)], need=("U", T), done=((lambda T=T: (deadU.add(T), pump_U())) if s == 15 else None))
            elif kind == "R":
                A, B = Rq(s >> 2), frag(s, q)
                done = None
                if s == 15 and q < 2: done = (lambda q=q: mem.append((f"ds_read_b32 v{U1(q+4)}, v{vU} offset:{2*1024 + 4*q}", ("U1", q + 4))))
                item = dict(ops=[(PACC(s), D + (s & 3), U1(q))], need=("U1", q), done=done)
            else:
                A = B = Rq(x)
                item = dict(ops=[(PACC(4 * x + t), D + t, URR + t) for t in range(4)], need=("URR",), done=None)
            if not cfg.get("nop"): e(f"v_mfma_f32_16x16x32_bf16 {q4('v', D)}, {A}, {B}, 0")
            item.update(n=n, pos=e.pos - 1); fm.append(item); tile_n[0] += 1
            if o["first"] and o["u"] + 1 < len(units):
                _, q2, s2 = units[o["u"] + 1]
                gate = [("G", q2, s2)]; ensure(gate); mem.extend(Prd(q2, s2))
            budget = 2
        nxt = ops[k + 1] if k + 1 < len(ops) else None
        before = len(e.lines)
        bar = nxt and nxt["kind"] == "M" and nxt["k"] == 0 and nxt["f"] in bar_at
        if bar:
            fb = nxt["f"]; pb = bar_at[fb]
            held = [m for m in mem if (m[1] is None or m[1][0] == "P") and gate]
            for m in held: mem.remove(m)
            if gate: e.need(*gate)
            want = [("A", fb, t) for t in range(4)] + [("G", pb + 1, 15)] + nxt["needs"]
            if pb >= 0: want += [("P", pb, s) for s in range(16)]
            if pb == 0: want += [("R", g) for g in range(4)]
            if pb == 1: want += [("U2", 5)]
            ensure(want); e.need(*want)
            if pb == -1: e.need("U1")
            e("s_barrier")
            barriers_done.add(pb)
            mem.extend(held)
            if pb == -1:
                mem.append((f"ds_read_b128 {q4('v', URR)}, v{vU} offset:0", ("URR",)))
                mem.append((f"ds_read_b128 {q4('v', U1(0))}, v{vU} offset:1024", ("U1", 0)))
                for q in range(1, 4): e.tags[("U1", q)] = None
                mem.extend(Prd(units[0][1], units[0][2]))
            pump_U()
            if cfg["stamps"] and pb in cfg["stamp_stages"]: stamp(e, cfg, 3 + cfg["stamp_stages"].index(pb))
        else:
            want = list(gate)
            if nxt and all(t in e.tags for t in nxt["needs"]): want += nxt["needs"]
            e.need(*want)
        if ("U1", 0) in e.tags and e.tags.get(("U1", 1), 0) is None:
            for q in range(1, 4): e.tags[("U1", q)] = e.tags[("U1", 0)]
        while gt and gt[0][0] <= o["t"] and released(gt[0]):
            _, gp, gs = gt.popleft(); gq.append((gp, gs))
        pump_G()
        if len(e.lines) == before: emit_scal(k)
        budget -= emit_gload()
        nm = 0
        while mem and nm < 2: budget -= emit_mem(); nm += 1
        if not red_queued and tile_n[0] == ntiles and not fm:
            red_queued = True; extra.extend(red)
        while budget > 0.5:
            if valu: emit_valu()
            elif fm_ready(): emit_fm()
            elif emit_scal(k - 1): pass
            elif extra: emit_extra()
            elif fm and tile_n[0] == ntiles: emit_fm()
            else: break
            budget -= 1
        if nxt and nxt["kind"] == "P": flush_fm(tile_n[0] - 3)
    assert not gt and not gq and gstate[0] is None and not scal and nextU[0] == 21
    while mem: emit_mem()
    while valu: emit_valu()
    flush_fm(1 << 30)
    if not red_queued: extra.extend(red)
    while extra: emit_extra()
    stamp(e, cfg, 6)
    TA = [96, 98, 100, 102]; M = [104, 106, 108, 110]
    ts = range(4)
    for u in range(2):
        for r in (0, 2):
            wf = 68 + 4 * u + r
            x = {t: f"v[{ACC+16*u+4*t+r}:{ACC+16*u+4*t+r+1}]" for t in ts}
            T = {t: f"v[{TA[t]}:{TA[t]+1}]" for t in ts}
            for t in ts: e(f"v_pk_mul_f32 {T[t]}, {x[t]}, {x[t]}")
            for t in ts: e(f"v_pk_fma_f32 {T[t]}, {T[t]}, s[60:61], v[36:37]")
            for t in ts: e(f"v_pk_mul_f32 {T[t]}, {T[t]}, {x[t]}")
            for t in ts: e(f"v_exp_f32 v{TA[t]}, v{TA[t]}\nv_exp_f32 v{TA[t]+1}, v{TA[t]+1}")
            for t in ts: e(f"v_pk_mul_f32 {x[t]}, {x[t]}, v[{wf}:{wf+1}]")
            for t in ts: e(f"v_pk_add_f32 {T[t]}, {T[t]}, v[38:39]")
            for t in ts: e(f"v_rcp_f32 v{TA[t]}, v{TA[t]}\nv_rcp_f32 v{TA[t]+1}, v{TA[t]+1}")
            for t in ts:
                m = f"v[{M[t]}:{M[t]+1}]"
                e(f"v_pk_mul_f32 {m}, {x[t]}, {T[t]}" if (u == 0 and r == 0) else f"v_pk_fma_f32 {m}, {x[t]}, {T[t]}, {m}")
    if cfg.get("tailst"): stamp(e, cfg, 4)
    for t in range(4): e(f"v_add_f32 v{M[t]}, v{M[t]}, v{M[t]+1}")
    e(f"v_lshlrev_b32 v2, 2, v0\ns_lshl_b32 s{sT}, s{sW}, 8\ns_add_u32 s{sT}, s{sT}, {MP_LDS}")
    e(f"v_permlane32_swap_b32 v{M[0]}, v{M[2]}\nv_permlane32_swap_b32 v{M[1]}, v{M[3]}\nv_add_u32 v3, s{sT}, v2\nv_add_f32 v{M[0]}, v{M[0]}, v{M[2]}\nv_add_f32 v{M[1]}, v{M[1]}, v{M[3]}")
    e(f"v_permlane16_swap_b32 v{M[0]}, v{M[1]}\nv_add_f32 v12, v{M[0]}, v{M[1]}")
    e("ds_write_b32 v3, v12")
    e.drain(vm=False)
    e("s_barrier")
    if cfg.get("tailst"): stamp(e, cfg, 5)
    e(f"s_cmp_lg_u32 s{sW}, 0\ns_cbranch_scc1 L_end")
    e(f"v_add_u32 v3, {MP_LDS}, v2")
    for k in range(5): e(f"ds_read_b32 v{12+k}, v3 offset:{256*k}")
    e(f"s_lshl_b32 s{sT}, s2, 7\nv_lshlrev_b32 v2, 1, v0")
    e.drain(vm=False)
    e(f"v_add_f32 v12, v12, v13\nv_add_f32 v14, v14, v15\nv_add_f32 v16, s{sB2}, v16\nv_add_f32 v12, v12, v14\nv_add_f32 v12, v12, v16")
    e("v_cvt_pk_bf16_f32 v12, v12, v12")
    e(f"buffer_store_short v12, v2, s[36:39], s{sT} offen {cfg['outsc']}")
    if cfg["stamps"]:
        stamp(e, cfg, 7)
        e("s_waitcnt lgkmcnt(0)\nv_cmp_eq_u32 vcc, 0, v0\ns_and_saveexec_b64 s[46:47], vcc")
        srd(e, 36, 22, STAMP_OFF + 256 * 64)
        e(f"s_lshl_b32 s{sT}, s2, 6\ns_add_u32 s{sT}, s{sT}, {STAMP_OFF}")
        for k in range(8):
            e(f"v_mov_b32 v2, s{80+2*k}\nv_mov_b32 v3, s{81+2*k}\nbuffer_store_dwordx2 v[2:3], off, s[36:39], s{sT} offset:{8*k}\ns_nop 1")
    e.label("L_end")
    e("s_endpgm")
    e.label("L_prod")
    e.vm_n = e.vm_done = e.lg_n = e.lg_done = 0
    e.release(*keep, f"s{sW1K}", f"s{sBW}", f"v{vU}", f"s{sB2}", *[f"v{48+k}" for k in range(16)])
    e("s_nop 4")
    srd(e, 32, 22, WS_SIZE); srd(e, 68, 20, 256)
    e(f"s_cmp_ge_u32 s{sPG}, {NPROD_W}\ns_cbranch_scc1 L_produ")
    e(f"s_and_b32 s46, s{sW}, 1\ns_lshr_b32 s47, s{sW}, 1\ns_lshl_b32 s48, s{sPG}, 1\ns_add_u32 s47, s47, s48")
    prod_issue_w(e); prod_finish_w(e); e("s_branch L_prodst")
    e.label("L_produ")
    e(f"s_sub_u32 s48, s{sPG}, {NPROD_W}\ns_lshl_b32 s48, s48, 2\ns_add_u32 s48, s48, s{sW}")
    prod_u(e)
    e.label("L_prodst")
    idx_dma(True)
    e(f"s_waitcnt vmcnt(7)\ns_barrier\ns_cmp_lg_u32 s{sW}, 0\ns_cbranch_scc1 L_nosig")
    if tags:
        e(f"s_lshr_b32 s46, s{sPG}, {TSH}\ns_lshl_b32 s46, s46, 7\ns_and_b32 s47, s{sPG}, {(1<<TSH)-1}\ns_lshl_b32 s47, s47, 2\ns_add_u32 s46, s46, s47\ns_add_u32 s46, s46, {WS_TAG}")
        e("s_lshr_b64 s[48:49], s[64:65], 9\nv_mov_b32 v98, s48\nv_mov_b32 v97, 1\ns_mov_b64 exec, 1\nbuffer_store_dword v98, off, s[32:35], s46 sc0 sc1")
        e("buffer_atomic_add v97, off, s[68:71], 0 sc1\ns_mov_b64 exec, -1")
        e("s_waitcnt vmcnt(2)\ns_branch L_sigdone")
    else:
        e("v_lshlrev_b32 v96, 7, v0\nv_mov_b32 v97, 1\ns_mov_b64 exec, 3\nbuffer_atomic_add v97, v96, s[68:71], 0 offen sc1\ns_mov_b64 exec, -1")
        e("s_waitcnt vmcnt(1)\ns_branch L_sigdone")
    e.label("L_nosig")
    e("s_waitcnt vmcnt(0)")
    e.label("L_sigdone")
    e.vm_n = e.vm_done = 0
    opening("p")
    e.label("L_codeend")
    return e

def kernel(name, e):
    return f".globl {name}\n.p2align 8\n.type {name},@function\n{name}:\n" + e.text()

NOTES = """;
; One workgroup = 64 samples on one CU (4 waves, 512 registers each).  Generated by a scheduling script; hand-designed.
;  * Embedding rows are gathered straight into LDS (buffer_load ... lds), 16 rows per instruction.  Fields 0..95 form 6 fragments of 16
;    (two LDS buffers hold the one in use and the next); fields 96..99 form block R, loaded first and kept packed 4 samples per operand.
;  * Pairwise branch: sum_ij w_p[i,j] <e_i,e_j> over the fragment pairs q <= p and the R pairs, one 16x16x32 MFMA per pair and
;    sample, weighted in f32 by U = w_p + w_p^T (w_p itself on the diagonal pairs).  Fragments 0-4 stay in registers.
;  * MLP: 16x16x32 MFMAs, wave w owns 32 hidden units for all 64 samples; accumulators start from b1; tanh-GELU and the w2 dot in f32.
;  * w1 (transposed into MFMA operand order) and U are built once per launch by 56 of the workgroups and handed over through d_ws:
;    write-through stores, s_waitcnt, barrier, then an arrival count in d_debug that readers check (bounded poll) before loading.
""".rstrip().split("\n")

def build(**kw):
    cfg = dict(stamps=False, codepf=True, stamp_stages=[-1, 1, 4], poll=16, npre=0, g1pre=4, plag=4, pend=[4,4,4,4,0], p0off=1, gend=[4,4,4,4,5], pmap=True, tags=False, gburst=1, outsc="", order="u")
    cfg.update(kw)
    m = gen_main(cfg)
    sys.stderr.write(f"instructions {sum(m.counts.values())}, padded wait states {m.nops}, waits {m.counts.get('s_waitcnt')}\n")
    return file_text([f"; @launch grid=(256,1,1) block=(256,1,1) lds={LDS_SIZE}"] + NOTES, kernel(KN, m), [descriptor(KN, 512, 256)])
if __name__ == "__main__":
    out = sys.argv[1]; kw = eval("dict(" + (sys.argv[2] if len(sys.argv) > 2 else "") + ")")
    open(out, "w").write(build(**kw))
```

```python
import re
REG = re.compile(r"^(-?)(abs\()?([vas])(\d+)\)?$|^([vas])\[(\d+):(\d+)\]$")
def regs_of(op):
    op = op.strip()
    if op in ("vcc",): return ["vcc"]
    if op in ("vcc_lo", "vcc_hi"): return ["vcc"]
    if op in ("exec", "exec_lo", "exec_hi"): return ["exec"]
    if op == "m0": return ["m0"]
    m = REG.match(op)
    if not m: return []
    if m.group(3): return [m.group(3) + m.group(4)]
    return [m.group(5) + str(i) for i in range(int(m.group(6)), int(m.group(7)) + 1)]
def isize(mn, ops, mods): return 8
TRANS = ("v_exp_f32", "v_log_f32", "v_rcp_f32", "v_rsq_f32", "v_sqrt_f32", "v_sin_f32", "v_cos_f32")
class Emit:
    def __init__(self):
        self.lines = []; self.pos = 0
        self.vm_n = 0; self.vm_done = 0; self.lg_n = 0; self.lg_done = 0
        self.tags = {}
        self.mfma_w = {}
        self.mfma_c = {}
        self.valu_w = {}
        self.trans_w = {}
        self.valu_sw = {}
        self.salu_m0 = -99
        self.store_data = {}
        self.nops = 0
        self.protected = {}
        self.align8 = False; self.bytes = 0
        self.counts = {}
    def raw(self, s): self.lines.append(s)
    def label(self, s): self.lines.append(s + ":")
    def comment(self, s): self.lines.append("  ; " + s)
    def nop(self, n):
        while n > 0:
            k = min(n, 16); self.lines.append(f"  s_nop {k-1}"); self.pos += k; n -= k; self.nops += k
    def parse(self, s):
        s = s.split(";")[0].strip()
        mn, _, rest = s.partition(" ")
        ops = [o.strip() for o in re.split(r",(?![^\[]*\])", rest)] if rest else []
        if ops:
            last = ops[-1].split()
            ops[-1] = last[0]; mods = last[1:]
        else: mods = []
        return mn, ops, mods
    def __call__(self, text, tag=None):
        for s in text.split("\n"):
            s = s.strip()
            if not s: continue
            if s.endswith(":"): self.label(s[:-1]); continue
            self.ins(s, tag)
    def protect(self, *regs):
        for r in regs: self.protected[r] = True
    def release(self, *regs):
        for r in regs: self.protected.pop(r, None)
    def uncounted(self, text):
        n = self.vm_n
        self(text)
        self.vm_n = n
    def ins(self, s, tag=None):
        mn, ops, mods = self.parse(s)
        R = [regs_of(o) for o in ops]
        rd, wr = [], []
        kind = "other"; need = 0
        def dist_req(p, req):
            return max(0, req - (self.pos - p - 1))
        ismfma = mn.startswith("v_mfma")
        isvalu = mn.startswith("v_") and not ismfma
        isds = mn.startswith("ds_"); isvm = mn.startswith(("buffer_", "global_"))
        islds_dma = isvm and "lds" in mods or mn.startswith("global_load_lds")
        if ismfma:
            wr = R[0]; rdAB = R[1] + R[2]; rdC = R[3]; rd = rdAB + rdC
            passes = 8 if "32x32x16" in mn else 4 if "16x16x32" in mn else None
            assert passes
            for r in rdAB:
                if r in self.mfma_w: p, ps, _ = self.mfma_w[r]; need = max(need, dist_req(p, {4: 8, 8: 12}[ps]))
            for r in rdC:
                if r in self.mfma_w:
                    p, ps, d = self.mfma_w[r]
                    if d == tuple(rdC) and ps == passes: pass
                    else: need = max(need, dist_req(p, {4: 6, 8: 10}[ps]))
            for r in wr:
                if r in self.mfma_w and r not in rdC:
                    p, ps, d = self.mfma_w[r]
                    if not (d == tuple(wr) and ps == passes): need = max(need, dist_req(p, {4: 8, 8: 12}[ps]))
            for r in rd:
                if r in self.valu_w: need = max(need, dist_req(self.valu_w[r], 2))
            if "exec" in self.valu_sw: need = max(need, dist_req(self.valu_sw["exec"], 4))
        elif isvalu:
            if mn.startswith("v_cmpx"): wr = R[0] + ["exec"]; rd = sum(R[1:], [])
            elif "swap" in mn: wr = R[0] + R[1]; rd = wr
            elif mn.startswith(("v_fmac", "v_dot2c")): wr = R[0]; rd = sum(R, [])
            elif mn.startswith(("v_add_co", "v_addc_co", "v_sub_co")): wr = R[0] + R[1]; rd = sum(R[2:], [])
            else: wr = R[0]; rd = sum(R[1:], [])
            isdpp = "_dpp" in mn
            if isdpp and any(m.startswith("bank_mask") and m != "bank_mask:0xf" for m in mods): rd = rd + wr
            if mn.startswith("v_cndmask") and len(ops) == 3: rd = rd + ["vcc"]
            for r in rd + wr:
                if r in self.mfma_w: p, ps, _ = self.mfma_w[r]; need = max(need, dist_req(p, {4: 8, 8: 12}[ps]))
            for r in wr:
                if r in self.mfma_c: p, ps = self.mfma_c[r]; need = max(need, dist_req(p, {4: 3, 8: 7}[ps]))
                if r in self.store_data: need = max(need, dist_req(self.store_data[r], 2))
            vsrc = [r for r in rd if r[0] in "va" and r != "vcc"]
            if isdpp or "permlane" in mn:
                for r in vsrc:
                    if r in self.valu_w: need = max(need, dist_req(self.valu_w[r], 2))
                if isdpp and "exec" in self.valu_sw: need = max(need, dist_req(self.valu_sw["exec"], 5))
            if mn.startswith(("v_readlane", "v_readfirstlane")):
                for r in vsrc:
                    if r in self.valu_w: need = max(need, dist_req(self.valu_w[r], 1))
                if "exec" in self.valu_sw: need = max(need, dist_req(self.valu_sw["exec"], 4))
            if mn not in TRANS:
                for r in vsrc:
                    if r in self.trans_w: need = max(need, dist_req(self.trans_w[r], 1))
            for r in rd:
                if (r[0] == "s" or r == "vcc") and r in self.valu_sw: need = max(need, dist_req(self.valu_sw[r], 2))
        elif isds:
            if mn.startswith("ds_read"): wr = R[0]; rd = sum(R[1:], [])
            else: rd = sum(R, [])
        elif isvm:
            if islds_dma: rd = sum(R, []); need = max(need, dist_req(self.salu_m0, 1))
            elif "_load" in mn: wr = R[0]; rd = sum(R[1:], [])
            elif "atomic" in mn: rd = sum(R, [])
            else: rd = sum(R, [])
            for r in rd:
                if r[0] == "s" and r in self.valu_sw: need = max(need, dist_req(self.valu_sw[r], 5))
        if isds or isvm:
            for r in rd + wr:
                if r in self.mfma_w: p, ps, _ = self.mfma_w[r]; need = max(need, dist_req(p, {4: 8, 8: 12}[ps]))
            for r in wr:
                if r in self.mfma_c: p, ps = self.mfma_c[r]; need = max(need, dist_req(p, {4: 3, 8: 7}[ps]))
                if r in self.store_data: need = max(need, dist_req(self.store_data[r], 1))
        for m_ in mods:
            if m_.startswith("offset:"):
                v_ = int(m_[7:], 0)
                assert 0 <= v_ <= (65535 if isds else 4095), f"offset out of range: {s}"
        if mn.startswith("s_") and R and mn.split("_")[1] not in ("cmp", "cbranch", "branch", "waitcnt", "nop", "barrier", "endpgm", "sleep", "setprio", "bitcmp1", "bitcmp0"): wr = R[0]
        for r in wr:
            assert r not in self.protected, f"write to protected register {r}: {s}"
        if need: self.nop(need)
        if self.align8:
            size = isize(mn, ops, mods)
            if size == 4 and self.bytes % 8 == 4: pass
            elif size == 8 and self.bytes % 8 == 4 and False: pass
            self.bytes += size
        self.lines.append("  " + s)
        p = self.pos
        if mn == "s_nop": self.pos += int(ops[0]) + 1
        else: self.pos += 1
        self.counts[mn] = self.counts.get(mn, 0) + 1
        if ismfma:
            for r in wr: self.mfma_w[r] = (p, passes, tuple(wr)); self.valu_w.pop(r, None)
            for r in rdC: self.mfma_c[r] = (p, passes)
        else:
            for r in wr: self.mfma_w.pop(r, None)
        if isvalu:
            for r in wr:
                if r[0] in "va" and r != "vcc":
                    self.valu_w[r] = p
                    if mn in TRANS: self.trans_w[r] = p
                    else: self.trans_w.pop(r, None)
                else: self.valu_sw[r] = p
        if mn.startswith("s_") and ops and "m0" in R[0] and not mn.startswith("s_cmp"): self.salu_m0 = p
        if isvm and "_store" in mn and ("x4" in mn or "x3" in mn):
            data = R[0] if mn.startswith("buffer") else R[1]
            for r in data: self.store_data[r] = p
        if isvm:
            self.vm_n += 1
            if tag is not None: self.tags[tag] = ("vm", self.vm_n)
        if isds:
            self.lg_n += 1
            if tag is not None: self.tags[tag] = ("lg", self.lg_n)
    def need(self, *tags):
        vm = lg = None
        for t in tags:
            k, n = self.tags[t]
            if k == "vm" and n > self.vm_done: vm = max(vm or 0, n)
            if k == "lg" and n > self.lg_done: lg = max(lg or 0, n)
        parts = []
        if vm is not None:
            c = min(63, self.vm_n - vm); parts.append(f"vmcnt({c})"); self.vm_done = self.vm_n - c
        if lg is not None:
            c = min(15, self.lg_n - lg); parts.append(f"lgkmcnt({c})"); self.lg_done = self.lg_n - c
        if parts: self.ins("s_waitcnt " + " ".join(parts))
    def drain(self, vm=True, lg=True):
        parts = []
        if vm: parts.append("vmcnt(0)"); self.vm_done = self.vm_n
        if lg: parts.append("lgkmcnt(0)"); self.lg_done = self.lg_n
        self.ins("s_waitcnt " + " ".join(parts))
    def text(self): return "\n".join(self.lines) + "\n"
```

```python
import sys, struct
from collections import deque
from asmlib import HEADER, KN, descriptor, file_text
from emit import Emit

SS = 1040; WREG = 16 * SS; BUF = 64 * SS; U_BASE = 2 * BUF; R_BASE = U_BASE + 12 * 1024; W2_LDS = U_BASE + 28 * 1024
MP_LDS = W2_LDS + 256; PP_LDS = MP_LDS + 1024; LDS_SIZE = PP_LDS + 256
WSTRIDE = 205824; WS_U = 4 * WSTRIDE; WS_TAG = WS_U + 24 * 1024; WS_SIZE = WS_TAG + 16 * 128
NPROD_W = 50; NPROD = 56
STAMP_OFF = 128 << 20
def f2u(x): return struct.unpack("<I", struct.pack("<f", x))[0]
LOG2E = 1.4426950408889634
C1 = 2 * 0.7978845608028654
K1 = -C1 * LOG2E; K2 = -C1 * 0.044715 * LOG2E

def q4(p, b): return f"{p}[{b}:{b+3}]"
def E(s, q): return q4("a", (q * 16 + s) * 4) if q < 4 else q4("v", 192 + 4 * s)
def T5(s): return q4("v", (12, 32)[s & 1])
def frag(s, q): return E(s, q) if q < 5 else T5(s)
def Rq(g): return q4("v", 48 + 4 * g)
def Dq(n): return 36 + 4 * (n % 3)
NU = 6
def Uq(T): return 64 + 4 * (T % NU)
def U1(p): return 88 + (p & 3)
URR = 12
def Aq(f, t): return 96 + 16 * (f & 1) + 4 * t
def Y(s): return 1 if 4 <= (s & 15) < 12 else 0
def Wq(j): return 128 + 4 * (j % 8)
ACC = 160
def PACC(s): return 16 + s
def IREG(p, m):
    if p < 4: return 192 + 4 * m + p
    return (252 if p == 4 else 92) + m
IR = 32
def Tidx(q, p): return p * (p + 1) // 2 + q
def X(j): return (-(j >> 2)) & 3
vCOFF, vWOFF, vA0, vCOFF1, vH, vP0, vP1, vU, vS = 1, 4, 5, 6, 7, 8, 9, 10, 11
vPOLL, vPADR, vB2, vCNT, vPF = 112, 120, 121, 122, 123
sW, sW1K, sIDX, sWOFF, sWREG, sT, sSEL, sB2, sWOFF2, sPG, sNOW, sBASE, sUO, sBW = 40, 41, 42, 43, 44, 45, 58, 59, 62, 63, 66, 67, 73, 75

def srd(e, d, b, nbytes):
    e(f"s_mov_b32 s{d}, s{b}\ns_and_b32 s{d+1}, s{b+1}, 0xffff\ns_mov_b32 s{d+2}, {nbytes}\ns_mov_b32 s{d+3}, 0x00020000")

PST = [None]
def prod_issue_w(e):
    srd(e, 36, 10, 819200)
    e("v_lshrrev_b32 v96, 4, v0\nv_lshlrev_b32 v96, 11, v96\nv_and_b32 v97, 15, v0\nv_lshl_add_u32 v96, v97, 3, v96")
    e("s_lshl_b32 s48, s47, 13\ns_lshl_b32 s49, s46, 7\ns_add_u32 s48, s48, s49")
    for x in range(8):
        e(f"buffer_load_dwordx2 v[{128+2*x}:{129+2*x}], v96, s[36:39], s48 offen offset:{256*x}", tag=("raw", x))
def prod_finish_w(e):
    e(f"s_mul_i32 s48, s46, {2*WSTRIDE}\ns_lshl_b32 s49, s47, 11\ns_add_u32 s48, s48, s49\ns_add_u32 s49, s48, {WSTRIDE}\nv_lshlrev_b32 v97, 4, v0")
    e("s_mov_b32 s50, 0x05040100\ns_mov_b32 s51, 0x07060302")
    e.need(("raw", 7))
    if PST[0]: stamp(e, PST[0], 3)
    for y in range(4):
        for j in range(4):
            e(f"v_perm_b32 v{100+4*y+j}, v{128+4*j+2+(y>>1)}, v{128+4*j+(y>>1)}, s{50+(y&1)}")
        e(f"buffer_store_dwordx4 {q4('v',100+4*y)}, v97, s[32:35], s{48+(y>>1)} offen offset:{1024*(y&1)} sc0 sc1", tag="st")
def prod_u(e):
    srd(e, 36, 8, 20000)
    e("v_and_b32 v94, 15, v0\nv_lshrrev_b32 v95, 4, v0")
    e("s_cmp_ge_u32 s48, 3\ns_cbranch_scc1 L_um\ns_cmp_ge_u32 s48, 1\ns_cbranch_scc1 L_u1")
    e(f"v_lshrrev_b32 v96, 2, v94\nv_mul_u32_u24 v98, 200, v95\nv_lshl_add_u32 v98, v96, 1, v98\nv_add_u32 v98, {2 * (96 * 100 + 96)}, v98\nbuffer_load_ushort v128, v98, s[36:39], 0 offen")
    e("v_and_b32 v96, 3, v0\ns_waitcnt vmcnt(0)\nv_lshlrev_b32 v128, 16, v128")
    for t in range(4): e(f"v_cmp_eq_u32 vcc, {t}, v96\nv_cndmask_b32 v{100+t}, 0, v128, vcc")
    e("s_branch L_ust")
    e.label("L_u1")
    e("s_sub_u32 s46, s48, 1\ns_lshl_b32 s46, s46, 6     ; 16 * first q")
    e(f"v_add_u32 v96, s46, v94\nv_mul_u32_u24 v98, 200, v95\nv_lshl_add_u32 v98, v96, 1, v98\nv_add_u32 v98, {2*96*100}, v98")
    e(f"v_mul_u32_u24 v99, 200, v96\nv_lshl_add_u32 v99, v95, 1, v99\nv_add_u32 v99, {2*96}, v99\nv_add_u32 v97, 6400, v99")
    for k in range(4): e(f"buffer_load_ushort v{128+k}, v98, s[36:39], 0 offen offset:{32*k}")
    for k in range(4): e(f"buffer_load_ushort v{132+k}, v{99 if k < 2 else 97}, s[36:39], 0 offen offset:{3200*(k&1)}")
    e("s_waitcnt vmcnt(0)")
    for k in range(8): e(f"v_lshlrev_b32 v{128+k}, 16, v{128+k}")
    for k in range(4): e(f"v_add_f32 v{100+k}, v{128+k}, v{132+k}")
    e("s_branch L_ust")
    e.label("L_um")
    e("s_sub_u32 s46, s48, 3\ns_mov_b32 s47, 0")
    for k in range(5):
        e("s_cmp_gt_u32 s46, s47\ns_cselect_b32 s49, 1, 0\ns_add_u32 s47, s47, s49\ns_mul_i32 s49, s49, s47\ns_sub_u32 s46, s46, s49")
    e("s_lshl_b32 s49, s47, 4\nv_add_u32 v96, s49, v94         ; column j")
    e("s_lshl_b32 s49, s46, 4\nv_lshl_add_u32 v97, v95, 2, s49")
    e("v_mul_u32_u24 v98, 200, v97\nv_lshl_add_u32 v98, v96, 1, v98")
    e("v_mul_u32_u24 v99, 200, v96\nv_lshl_add_u32 v99, v97, 1, v99")
    e("s_cmp_eq_u32 s46, s47\ns_cselect_b32 s49, 0x100000, 0\nv_add_u32 v99, s49, v99   ; diagonal tile: no transposed part")
    for r in range(4): e(f"buffer_load_ushort v{128+r}, v98, s[36:39], 0 offen offset:{200*r}")
    e("buffer_load_dwordx2 v[132:133], v99, s[36:39], 0 offen")
    e("s_waitcnt vmcnt(0)")
    for r in range(4): e(f"v_lshlrev_b32 v{128+r}, 16, v{128+r}")
    e("v_lshlrev_b32 v134, 16, v132\nv_and_b32 v135, 0xffff0000, v132\nv_lshlrev_b32 v136, 16, v133\nv_and_b32 v137, 0xffff0000, v133")
    for r in range(4): e(f"v_add_f32 v{100+r}, v{128+r}, v{134+r}")
    e.label("L_ust")
    e(f"s_lshl_b32 s48, s48, 10\ns_add_u32 s48, s48, {WS_U}\nv_lshlrev_b32 v97, 4, v0")
    e("buffer_store_dwordx4 v[100:103], v97, s[32:35], s48 offen sc0 sc1")

def stamp(e, cfg, k):
    if cfg["stamps"]: e(f"{'s_memtime' if cfg['stamps']==2 else 's_memrealtime'} s[{80+2*k}:{81+2*k}]")

def gen_main(cfg):
    e = Emit()
    sst = cfg.get("sst", []); poll = cfg["poll"]; npre = cfg["npre"]; g1pre = cfg["g1pre"]; TSH = 2
    assert 1 <= poll <= 20 and npre <= g1pre
    e.label("L_start")
    e("s_cmp_ge_u32 s2, 256\ns_cbranch_scc1 L_end")
    e("s_load_dwordx16 s[4:19], s[0:1], 0\ns_load_dwordx4 s[20:23], s[0:1], 64")
    if cfg["tags"]: e("s_memrealtime s[64:65]")
    stamp(e, cfg, 0)
    e(f"v_lshrrev_b32 v9, 6, v0\nv_and_b32 v0, 63, v0\nv_readfirstlane_b32 s{sW}, v9\nv_lshlrev_b32 v{vWOFF}, 4, v0")
    e.protect("v0", f"v{vWOFF}", f"s{sW}", "s2", *[f"s{k}" for k in range(4, 24)])
    if cfg["codepf"]:
        e("s_getpc_b64 s[46:47]")
        e.label("L_pc")
        e("s_sub_u32 s46, s46, L_pc-L_start\ns_subb_u32 s47, s47, 0")
        e(f"s_lshr_b32 s48, s2, 3\ns_and_b32 s48, s48, 31\ns_lshl_b32 s48, s48, 10\ns_lshl_b32 s49, s{sW}, 8\ns_add_u32 s48, s48, s49\ns_sub_u32 s48, s48, 1280")
        e(f"s_lshl_b32 s49, s{sW}, 9\nv_lshl_add_u32 v2, v0, 7, s49\nv_lshl_add_u32 v3, v0, 7, s48\ns_mul_i32 s49, s{sW}, 768\ns_add_u32 s49, s49, L_prod-L_start-512\nv_lshl_add_u32 v5, v0, 7, s49")
        e("v_cmp_gt_u32 vcc, 4, v0\nv_cndmask_b32 v5, v5, v2, vcc\nv_cmp_gt_u32 vcc, 10, v0\nv_cndmask_b32 v5, v3, v5, vcc\nv_min_u32 v5, L_codeend-L_start-4, v5")
        e(f"s_mov_b64 exec, 0xfff\nglobal_load_dword v{vPF}, v5, s[46:47]\ns_mov_b64 exec, -1")
    e(f"s_mul_i32 s{sWREG}, s{sW}, {WREG}\ns_lshl_b32 s{sIDX}, s2, 6\ns_lshl_b32 s{sT}, s{sW}, 4\ns_add_u32 s{sIDX}, s{sIDX}, s{sT}\ns_mul_i32 s{sIDX}, s{sIDX}, 400")
    e(f"s_add_u32 m0, s{sWREG}, {BUF}\ns_mov_b32 s26, 6553600\ns_mov_b32 s27, 0x00020000\ns_add_u32 s{sT}, s{sIDX}, 4096")
    e.protect(f"s{sWREG}", f"s{sIDX}", "s26", "s27")
    if cfg["pmap"]: e(f"s_lshr_b32 s{sPG}, s2, 3\ns_lshl_b32 s{sPG}, s{sPG}, 2\ns_and_b32 s46, s2, 3\ns_or_b32 s{sPG}, s{sPG}, s46\ns_and_b32 s46, s2, 4\ns_lshl_b32 s46, s46, 6\ns_or_b32 s{sPG}, s{sPG}, s46")
    else: e(f"s_mov_b32 s{sPG}, s2")
    e(f"s_cmp_lt_u32 s{sPG}, {NPROD}")
    e("s_waitcnt lgkmcnt(0)")
    e("s_cbranch_scc1 L_prod")
    def idx_dma(setup):
        if setup: e(f"s_add_u32 m0, s{sWREG}, {BUF}\ns_add_u32 s{sT}, s{sIDX}, 4096")
        e("s_mov_b32 s24, s4\ns_and_b32 s25, s5, 0xffff")
        for k in range(7):
            if k == 4: e("s_add_u32 m0, m0, 4096")
            if k == 6: e("s_mov_b64 exec, 0xffff")
            e(f"buffer_load_dwordx4 v{vWOFF}, s[24:27], s{sIDX if k < 4 else sT} offen offset:{1024*(k%4)} nt lds", tag="idx")
            e.tags[("idx", k)] = e.tags["idx"]
        e("s_mov_b64 exec, -1")
    shifted = set(); gcount = [0]
    def Ird(p):
        for m in range(4): e(f"ds_read_b32 v{IREG(p,m)}, v5 offset:{1600*m+64*p}", tag=("I", p, m))
    def shift_idx(p, m):
        if (p, m) in shifted: return
        shifted.add((p, m)); e.need(("I", p, m))
        r = IR if p == "R" else IREG(p, m)
        e(f"v_lshlrev_b32 v{r}, 6, v{r}")
    def G(p, s):
        t = 2 + (gcount[0] & 1); gcount[0] += 1
        if p == "R":
            shift_idx("R", 0); r = IR; j = s
            e(f"s_add_u32 m0, s74, {s*1024}")
        else:
            shift_idx(p, s >> 2); r = IREG(p, s >> 2); j = s & 3
            e(f"s_add_u32 m0, s{sWREG}, {(p&1)*BUF + s*SS}")
        c = vCOFF1 if (p != "R" and Y(s)) else vCOFF
        e(f"v_add_u32_dpp v{t}, v{r}, v{c} quad_perm:[{j},{j},{j},{j}] row_mask:0xf bank_mask:0xf")
        e(f"buffer_load_dwordx4 v{t}, s[28:31], 0 offen lds", tag=("G", p, s))
    def Wtxt(j): return f"buffer_load_dwordx4 {q4('v', Wq(j))}, v{vWOFF}, s[32:35], s{(sWOFF, sWOFF2)[(j>>2)&1]} offen offset:{(j%4)*1024} sc1"
    def Winc(j):
        r = (sWOFF, sWOFF2)[(j >> 2) & 1]
        return f"s_sub_u32 s{r}, s{r}, {192*1024}" if j < 8 else f"s_add_u32 s{r}, s{r}, 8192"
    def W(j):
        e(Wtxt(j), tag=("W", j))
        if j % 4 == 3: e(Winc(j))
    def Utxt(k): return [f"s_add_u32 m0, s{sW1K}, {U_BASE + 4096*k}", f"buffer_load_dwordx4 v{vWOFF}, s[32:35], s{sUO} offen sc1 lds", f"s_add_u32 s{sUO}, s{sUO}, 4096"]
    tags = cfg["tags"]
    polltxt = f"buffer_load_dword v{vPOLL}, v{vPADR}, s[32:35], 0 offen sc1" if tags else f"buffer_load_dword v{vPOLL}, v{vPADR}, s[68:71], 0 offen sc1"
    keep = [f"v{vCOFF}", f"v{vCOFF1}", f"v{vPADR}"] + [f"s{k}" for k in list(range(24, 26)) + list(range(28, 36)) + list(range(68, 72))]
    def opening(x):
        shifted.clear(); gcount[0] = 0
        srd(e, 28, 6, 6400000)
        if cfg["spf"] and not x:
            n, st = cfg["spf"]
            e(f"s_lshl_b32 s46, s2, 2\ns_add_u32 s46, s46, s{sW}\ns_mul_i32 s46, s46, {48*128}")
            for k in range(n):
                e(f"s_buffer_load_dword s47, s[28:31], s46")
                if k < n - 1: e(f"s_add_u32 s46, s46, {st*128}")
        e("v_and_b32 v2, 3, v0\nv_lshrrev_b32 v3, 4, v0")
        e(f"v_sub_u32 v{vCOFF}, 0, v3\nv_and_b32 v{vCOFF}, 3, v{vCOFF}\nv_xor_b32 v{vCOFF}, v{vCOFF}, v2\nv_lshlrev_b32 v{vCOFF}, 4, v{vCOFF}\nv_xor_b32 v{vCOFF1}, 16, v{vCOFF}")
        e(f"v_mul_u32_u24 v5, 400, v2\nv_lshrrev_b32 v8, 2, v0\nv_lshl_add_u32 v5, v8, 2, v5\ns_add_u32 s{sT}, s{sWREG}, {BUF}\nv_add_u32 v5, s{sT}, v5")
        e(f"v_mul_u32_u24 v7, 1600, v2\nv_and_b32 v8, 3, v8\nv_mul_u32_u24 v8, 400, v8\nv_add_u32 v7, v7, v8\nv_lshl_add_u32 v7, v3, 2, v7\nv_add_u32 v7, s{sT}, v7")
        e(f"s_lshl_b32 s74, s{sW}, 12\ns_add_u32 s74, s74, {R_BASE}")
        def Ird1(p, m): e(f"ds_read_b32 v{IREG(p,m)}, v5 offset:{1600*m+64*p}", tag=("I", p, m))
        def setup2():
            if not x: srd(e, 32, 22, WS_SIZE); srd(e, 68, 20, 256)
            if not tags: e(f"s_and_b32 s{sT}, s2, 1\ns_lshl_b32 s{sT}, s{sT}, 7\nv_mov_b32 v{vPADR}, s{sT}")
            if tags: e(f"s_lshr_b64 s[64:65], s[64:65], 9\ns_mov_b32 s{sNOW}, s64")
            if tags: e(f"v_min_u32 v{vPADR}, {NPROD-1}, v0\nv_lshrrev_b32 v8, {TSH}, v{vPADR}\nv_and_b32 v{vPADR}, {(1<<TSH)-1}, v{vPADR}\nv_lshlrev_b32 v{vPADR}, 2, v{vPADR}\nv_lshl_add_u32 v{vPADR}, v8, 7, v{vPADR}\nv_add_u32 v{vPADR}, {WS_TAG}, v{vPADR}")
            e.protect("v5", *keep)
        seq = []
        for m, k in ((0, 1), (1, 3), (2, 4)): seq += [("idx", k, [(0, m)])] + [("G", 0, 4 * m + j) for j in range(4)]
        seq += [("idx", 6, [(0, 3), "R"])] + [("G", "R", g) for g in range(4)] + [("G", 0, 12 + j) for j in range(4)]
        ng = 0
        for it in seq:
            if it[0] == "idx":
                if not x: e.need(("idx", it[1]))
                for r in it[2]:
                    if r == "R": e(f"ds_read_b32 v{IR}, v7 offset:384", tag=("I", "R", 0))
                    else: Ird1(*r)
                if it[1] == 1 and not sst: stamp(e, cfg, 1)
                if it[1] == 6: Ird(1); Ird(2)
                continue
            G(it[1], it[2]); ng += 1
            if ng == 1: setup2()
            if it[1:] == ("R", 3): e.need(("I", 2, 3)); Ird(3); Ird(4); Ird(5)
            if ng == poll:
                e(f"s_cmp_lg_u32 s{sW}, 0\ns_cbranch_scc1 L_np{x}")
                e.uncounted(polltxt)
                e.label(f"L_np{x}")
        e(f"s_lshl_b32 s{sW1K}, s{sW}, 10\ns_mul_i32 s{sWOFF}, s{sW}, {WSTRIDE}\ns_add_u32 s{sWOFF}, s{sWOFF}, {192*1024}\ns_add_u32 s{sWOFF2}, s{sWOFF}, 4096\ns_add_u32 s{sUO}, s{sW1K}, {WS_U}")
        e(f"v_lshrrev_b32 v2, 4, v0\nv_lshlrev_b32 v2, 5, v2\ns_lshr_b32 s{sT}, s{sW}, 1\ns_lshl_b32 s{sT}, s{sT}, 7\ns_and_b32 s{sBW}, s{sW}, 1\ns_lshl_b32 s{sBW}, s{sBW}, 2\ns_add_u32 s{sBW}, s{sBW}, s{sT}\nv_add_u32 v2, s{sBW}, v2")
        srd(e, 36, 12, 256)
        for r in range(4): e(f"buffer_load_dword v{96+r}, v2, s[36:39], 0 offen offset:{8*r}", tag="b1")
        srd(e, 36, 16, 2)
        e(f"buffer_load_ushort v{vB2}, off, s[36:39], 0", tag="b2")
        srd(e, 36, 14, 256)
        e(f"s_mov_b32 m0, {W2_LDS}\nv_lshlrev_b32 v2, 2, v0\nbuffer_load_dword v2, s[36:39], 0 offen lds", tag="w2")
        if x: e("s_branch L_join")
    idx_dma(False)
    opening("")
    e.label("L_join")
    e("s_nop 1")
    e.protect(f"s{sW1K}", f"s{sBW}", f"v{vB2}", f"v{vPF}", f"v{vPOLL}", *[f"v{96+k}" for k in range(4)])
    e(f"v_lshrrev_b32 v3, 4, v0\nv_lshlrev_b32 v{vH}, 4, v3      ; chunk * 16")
    e(f"v_bfe_u32 v2, v0, 2, 2\nv_sub_u32 v9, 0, v2\nv_and_b32 v9, 3, v9\nv_xor_b32 v9, v9, v3\nv_and_b32 v{vP0}, 15, v0\nv_lshlrev_b32 v{vP0}, 6, v{vP0}\nv_lshl_add_u32 v{vP0}, v9, 4, v{vP0}")
    e(f"v_add_u32 v33, s74, v{vP0}")
    e(f"v_add_u32 v{vP0}, s{sWREG}, v{vP0}\nv_add_u32 v{vP1}, {BUF}, v{vP0}")
    e(f"v_bfe_u32 v{vS}, v0, 2, 2\nv_lshlrev_b32 v{vS}, 10, v{vS}\nv_and_b32 v2, 3, v0\nv_lshl_add_u32 v{vS}, v2, 6, v{vS}\nv_add_u32 v{vS}, {R_BASE}, v{vS}")
    e(f"v_add_u32 v{vU}, {U_BASE}, v{vWOFF}")
    e.protect(f"v{vU}", "v33")
    for s in range(16): e(f"v_mov_b32 v{PACC(s)}, 0")
    for p in range(1, 6):
        for m in range(4): shift_idx(p, m)
    for s in range(npre): G(1, s)
    e.need(("G", "R", 3))
    e(f"s_cmp_lg_u32 s{sW}, 0\ns_cbranch_scc1 L_ready")
    e.release(f"v{vPOLL}")
    def tagcheck(span):
        e(f"v_subrev_u32 v{vPOLL}, s{sBASE}, v{vPOLL}\nv_cmp_lt_u32 vcc, {span}, v{vPOLL}\ns_nop 0\ns_cbranch_vccz L_ready")
    if tags:
        e(f"s_sub_u32 s{sBASE}, s{sNOW}, 2")
        e(f"s_waitcnt vmcnt({20 - poll + 6 + npre})")
        tagcheck(4)
        e(f"s_mov_b32 s{sT}, 0")
        e.label("L_spin")
        e.uncounted(polltxt)
        e.uncounted(f"buffer_load_dword v{vCNT}, off, s[68:71], 0 sc1")
        e(f"s_memrealtime s[64:65]\ns_add_u32 s{sT}, s{sT}, 1\ns_waitcnt vmcnt(0) lgkmcnt(0)\nv_cmp_le_u32 vcc, {NPROD}, v{vCNT}\ns_lshr_b64 s[64:65], s[64:65], 9\ns_cbranch_vccnz L_ready")
        e(f"s_sub_u32 s72, s64, s{sBASE}\ns_add_u32 s72, s72, 1")
        tagcheck("s72")
    else:
        e(f"s_waitcnt vmcnt({20 - poll + 6 + npre})")
        e(f"v_cmp_le_u32 vcc, {NPROD}, v{vPOLL}\ns_nop 0\ns_cbranch_vccnz L_ready")
        e(f"s_mov_b32 s{sT}, 0")
        e.label("L_spin")
        e.uncounted(polltxt)
        e(f"s_add_u32 s{sT}, s{sT}, 1\ns_waitcnt vmcnt(0)\nv_cmp_le_u32 vcc, {NPROD}, v{vPOLL}\ns_nop 0\ns_cbranch_vccnz L_ready")
    e(f"s_sleep 8\ns_cmp_lt_u32 s{sT}, 0x20000\ns_cbranch_scc1 L_spin")
    e.label("L_ready")
    e("s_barrier")
    if not sst and not cfg.get("ist"): stamp(e, cfg, 2)
    for j in range(4): W(j)
    for k in range(3):
        a, b, c = Utxt(k); e(a); e(b, tag="U1"); e(c)
    for j in range(4, 8): W(j)
    for g in range(4): e(f"ds_read_b128 {Rq(g)}, v33 offset:{g*1024}", tag=("R", g))
    for s in range(npre, g1pre): G(1, s)
    e.need("b1", "b2", "w2")
    e.release(f"v{vB2}", f"v{vPF}", f"v{vPADR}", "v5", "v33")
    e(f"v_lshlrev_b32 v{vB2}, 16, v{vB2}")
    for r in range(4):
        for t in range(4): e(f"v_lshlrev_b32 v{ACC+4*t+r}, 16, v{96+r}\nv_and_b32 v{ACC+16+4*t+r}, 0xffff0000, v{96+r}")
    e(f"v_readfirstlane_b32 s{sB2}, v{vB2}")
    e.release(*[f"v{96+k}" for k in range(4)])
    e.protect(f"s{sB2}", *[f"v{48+k}" for k in range(16)])
    if cfg["stamps"] and -2 in cfg["stamp_stages"]: stamp(e, cfg, 3 + cfg["stamp_stages"].index(-2))

    stage_of = lambda f: -1 if f < 4 else (f - 4) // 16
    last_of = {p: 4 + 16 * p + 15 for p in range(-1, 5)}; last_of[-1] = 3
    bar_at = {f: p for p, f in last_of.items()}
    scal, mem, valu, fm, gq = deque(), deque(), deque(), deque(), deque()
    slot = [0]; tile_n = [0]; nextU = [0]; deadU = set(); gstate = [None]; barriers_done = set()
    def Axad(f):
        if f < 4: x = X(4 * f)
        else:
            j = (f - 4) % 16
            if j % 4: return []
            x = X(j)
        return [f"v_xad_u32 v{vA0}, v{vH}, {x<<4}, v{vS}"]
    def Ard(f):
        off = (lambda t: t * 4096 + f * 256) if f < 4 else (lambda t: t * 16 * SS + ((f - 4) % 16) * 64)
        return [(f"ds_read_b128 {q4('v', Aq(f,t))}, v{vA0} offset:{off(t)}", ("A", f, t)) for t in range(4)]
    def Prd(p, s):
        r = vP0 + (p & 1)
        flip = [(f"v_xor_b32 v{r}, 16, v{r}", None)] if s in (4, 12) else []
        return flip + [(f"ds_read_b128 {frag(s,p)}, v{r} offset:{s*SS}", ("P", p, s))]
    def pump_U():
        while nextU[0] < 21 and (nextU[0] < NU or (nextU[0] - NU) in deadU) and (-1 in barriers_done) and (nextU[0] < 9 or 1 in barriers_done):
            T = nextU[0]; mem.append((f"ds_read_b128 {q4('v', Uq(T))}, v{vU} offset:{(3+T)*1024}", ("U", T))); nextU[0] += 1
    def pump_G():
        if gstate[0] is None and gq:
            p, s = gq.popleft()
            if p == "U":
                a, b, c = Utxt(s)
                st = dict(left=1, load=(b, ("U2", s)), after=c)
                scal.append((a, lambda: mark(st), slot[0]))
            else:
                t = 2 + (gcount[0] & 1); gcount[0] += 1; j = s & 3
                st = dict(left=2, load=(f"buffer_load_dwordx4 v{t}, s[28:31], 0 offen lds", ("G", p, s)), after=None)
                scal.append((f"s_add_u32 m0, s{sWREG}, {(p&1)*BUF + s*SS}", lambda: mark(st), slot[0]))
                valu.append((f"v_add_u32_dpp v{t}, v{IREG(p, s>>2)}, v{vCOFF1 if Y(s) else vCOFF} quad_perm:[{j},{j},{j},{j}] row_mask:0xf bank_mask:0xf", lambda: mark(st)))
            gstate[0] = st
    def mark(st):
        st["left"] -= 1
        if st["left"] == 0: st["ready_slot"] = slot[0] + 1
    def emit_scal(upto=1 << 30):
        for it in scal:
            if it[2] <= upto:
                scal.remove(it); e(it[0])
                if it[1]: it[1]()
                return True
        return False
    def emit_valu():
        it = valu.popleft()
        if isinstance(it, str): e(it)
        else:
            e(it[0]); it[1]()
    def emit_mem():
        it = mem.popleft()
        if it[1] and ((cfg.get("noard") and it[1][0] == "A") or (cfg.get("noprd") and it[1][0] == "P")): e.tags[it[1]] = ("lg", e.lg_n); return 0.8
        if it[1] and cfg.get("now") and it[1][0] == "W": e.tags[it[1]] = ("vm", e.vm_n); return 0.3
        e(it[0], tag=it[1])
        return 0.8 if it[0].startswith("ds_") else 0.3
    def emit_gload():
        st = gstate[0]
        if st is not None and st["left"] == 0 and st["ready_slot"] <= slot[0]:
            if cfg.get("nog") and st["load"][1][0] == "G": e.tags[st["load"][1]] = ("vm", e.vm_n)
            else: e(st["load"][0], tag=st["load"][1])
            if st["after"]: e(st["after"])
            gstate[0] = None; pump_G(); return 0.75
        return 0
    def force_G(tag):
        while tag not in e.tags:
            assert gstate[0] is not None, tag
            st = gstate[0]
            while st["left"]:
                if scal: emit_scal()
                if st["left"] and valu: emit_valu()
            st["ready_slot"] = slot[0]; emit_gload()
    def ensure(tg):
        for t in tg:
            if t[0] in ("G", "U2"): force_G(t)
            while t not in e.tags: emit_mem()
    def fm_ready(): return fm and (e.pos - fm[0]["pos"] - 1) >= 8
    def emit_fm():
        t = fm[0]; acc, d, u = t["ops"].pop(0)
        if t["need"]: ensure([t["need"]]); e.need(t["need"]); t["need"] = None
        if not cfg.get("nofma"): e(f"v_fmac_f32 v{acc}, v{d}, v{u}")
        if not t["ops"]:
            fm.popleft()
            if t["done"]: t["done"]()
    def flush_fm(upto):
        while fm and fm[0]["n"] <= upto:
            if not fm_ready() and valu: emit_valu()
            else: emit_fm()
    extra = deque()
    red = []
    P = PACC
    for s in range(8): red += [f"v_permlane32_swap_b32 v{P(s)}, v{P(s+8)}"]
    for s in range(8): red += [f"v_add_f32 v{P(s)}, v{P(s)}, v{P(s+8)}"]
    for s in range(4): red += [f"v_permlane16_swap_b32 v{P(s)}, v{P(s+4)}"]
    for s in range(4): red += [f"v_add_f32 v{P(s)}, v{P(s)}, v{P(s+4)}"]
    for s in range(2): red += [f"v_add_f32_dpp v{P(s+4)}, v{P(s)}, v{P(s)} row_ror:8 row_mask:0xf bank_mask:0xf"]
    for s in range(2): red += [f"v_add_f32_dpp v{P(s+4)}, v{P(s+2)}, v{P(s+2)} row_ror:8 row_mask:0xf bank_mask:0xc"]
    red += [f"v_add_f32_dpp v{P(0)}, v{P(4)}, v{P(4)} row_half_mirror row_mask:0xf bank_mask:0xf"]
    red += [f"v_and_b32 v3, 60, v0", f"v_add_f32_dpp v{P(0)}, v{P(5)}, v{P(5)} row_half_mirror row_mask:0xf bank_mask:0xa"]
    red += [f"s_lshl_b32 s{sT}, s{sW}, 6", f"s_add_u32 s{sT}, s{sT}, {PP_LDS}"]
    red += [f"v_add_f32_dpp v{P(0)}, v{P(0)}, v{P(0)} quad_perm:[1,0,3,2] row_mask:0xf bank_mask:0xf", f"v_add_u32 v3, s{sT}, v3"]
    red += [f"s_add_u32 s{sT}, s{sBW}, {W2_LDS}", "v_lshrrev_b32 v2, 4, v0", f"v_lshl_add_u32 v2, v2, 5, s{sT}", f"v_add_f32_dpp v{P(0)}, v{P(0)}, v{P(0)} quad_perm:[2,3,0,1] row_mask:0xf bank_mask:0xf"]
    W2R = 64
    red += [f"ds_write_b32 v3, v{P(0)}"]
    red += [(f"ds_read_b32 v{W2R+r}, v2 offset:{8*r}", ("w2r", r)) for r in range(4)]
    red += [f"s_mov_b32 s60, {hex(f2u(K2))}", f"s_mov_b32 s61, {hex(f2u(K2))}", f"v_mov_b32 v36, {hex(f2u(K1))}", f"v_mov_b32 v37, {hex(f2u(K1))}", "v_mov_b32 v38, 1.0", "v_mov_b32 v39, 1.0"]
    red += [f"s_mov_b32 s36, s18", "s_and_b32 s37, s19, 0xffff", "s_mov_b32 s38, 32768", "s_mov_b32 s39, 0x00020000"]
    red += [("need", ("w2r", 3))]
    for r in range(4): red += [f"v_lshlrev_b32 v{68+r}, 16, v{W2R+r}", f"v_and_b32 v{72+r}, 0xffff0000, v{W2R+r}"]
    def emit_extra():
        it = extra.popleft()
        if isinstance(it, str): e(it)
        elif it[0] == "need": e.need(it[1])
        else: e(it[0], tag=it[1])

    LAG = cfg["plag"]; GEND = cfg["gend"]
    units = [(4 + cfg["p0off"] + s * (15 - cfg["p0off"]) / 16.0, 0, s) for s in range(16)]
    PEND = cfg["pend"] if isinstance(cfg["pend"], (list, tuple)) else [cfg["pend"]] * 5
    tprev = 0
    for p in range(1, 6):
        t0 = max(4 + 16 * (p - 1) + LAG, tprev); t1 = 4 + 16 * p + PEND[p - 1]
        units += [(t0 + s * (t1 - t0) / 16.0, p, s) for s in range(16)]; tprev = t1
    units.sort()
    ops = []
    for f in range(100):
        for k in range(8):
            if cfg["order"] == "u": u, tt = k >> 2, (k if k < 4 else 7 - k)
            else: u, tt = (1 ^ (k & 1) ^ ((k >> 1) & 1)), k >> 1
            ops.append(dict(t=f + k / 8.0 - 1e-4, kind="M", f=f, k=k, u=u, tt=tt))
    ntiles = 0
    for u, (t0, p, s) in enumerate(units):
        tl = [("N", k) for k in range(p + 1)] + [("R", p)] + ([("RR", s >> 2)] if p == 0 and s % 4 == 0 else [])
        t1 = units[u + 1][0] if u + 1 < len(units) else t0 + 1
        for k, x in enumerate(tl): ops.append(dict(t=t0 + (k + 0.5) * (t1 - t0) / len(tl), kind="P", u=u, first=(k == 0), tile=x, p=p, s=s))
        ntiles += len(tl)
    ops.sort(key=lambda o: o["t"])
    gt = []
    for p in range(1, 6):
        for s in range(16):
            if p == 1 and s < g1pre: continue
            ge = GEND[p - 1] if isinstance(GEND, (list, tuple)) else GEND
            gb = cfg["gburst"]
            t = 4 + 16 * (p - 1) - 1 + (s // gb * gb) * (16 - ge - (gb - 1) * 0.25) / (16.0 - gb) if gb < 16 else 4 + 16 * (p - 1) - 1
            if p == 1: t = (s - g1pre) * (19 - ge) / max(1.0, 15.0 - g1pre)
            gt.append((t, p, s))
    for k in range(3, 6): gt.append((19 + 2.1 + 3 * (k - 3), "U", k))
    gt = deque(sorted(gt, key=lambda x: x[0]))
    for o in ops:
        if o["kind"] == "M":
            f, k8 = o["f"], o["k"]
            if cfg["order"] == "u": o["needs"] = {0: [("A", f, 1), ("W", 2 * f)], 2: [("A", f, 3)], 4: [("W", 2 * f + 1)]}.get(k8, [])
            else: o["needs"] = {0: [("A", f, 1), ("W", 2 * f + 1)], 4: [("A", f, 3)]}.get(k8, [])
        else:
            o["needs"] = [("P", o["p"], o["s"])] if o["first"] else []
            if o["tile"][0] in ("R", "RR"): o["needs"] = o["needs"] + [("R", o["s"] >> 2)]
    for _ in range(cfg.get("shift", 0)): e("s_nop 0")
    for x in Axad(0): e(x)
    mem.extend(Ard(0))
    while mem: emit_mem()
    for x in Axad(1): e(x)
    red_queued = False
    def released(g):
        if g[1] == "U": return 0 in barriers_done
        return g[1] < 2 or (g[1] - 2) in barriers_done
    for k, o in enumerate(ops):
        slot[0] = k
        ensure(o["needs"]); e.need(*o["needs"])
        gate = []
        if o["kind"] == "M":
            f, k8, u, tt = o["f"], o["k"], o["u"], o["tt"]
            if k8 == 0 and f in sst: stamp(e, cfg, 1 + sst.index(f))
            c = q4("v", ACC + 16 * u + 4 * tt)
            if not cfg.get("nom"): e(f"v_mfma_f32_16x16x32_bf16 {c}, {q4('v', Wq(2*f+u))}, {q4('v', Aq(f,tt))}, {c}")
            j = 2 * f + u + 8
            if k8 in ((3, 7) if cfg["order"] == "u" else (6, 7)) and j < 200:
                if j % 4 == 0:
                    for it in [x for x in scal if x[0] == Winc(j)]: scal.remove(it); e(it[0])
                mem.appendleft((Wtxt(j), ("W", j)))
                if j % 4 == 3: scal.append((Winc(j), None, k + 1))
            if k8 == 0 and f < 99:
                while any(isinstance(x, str) for x in valu): emit_valu()
                assert f not in bar_at or bar_at[f] in barriers_done
                mem.extend(Ard(f + 1))
            if k8 == 4 and f < 98:
                while any(m[1] and m[1][0] == "A" for m in mem): emit_mem()
                if f + 2 == 4:
                    valu.extend([f"v_and_b32 v{vS}, 15, v0", f"v_add_u32 v{vA0}, 4, v{vS}", f"v_and_b32 v{vA0}, 8, v{vA0}", f"v_lshlrev_b32 v{vA0}, 1, v{vA0}",
                                 f"v_xor_b32 v{vH}, v{vH}, v{vA0}", f"v_mul_u32_u24 v{vS}, {SS}, v{vS}"])
                elif f + 2 > 4 and (f + 2 - 4) % 16 == 0: valu.append(f"{'v_add_u32' if stage_of(f) % 2 == 0 else 'v_subrev_u32'} v{vS}, {BUF}, v{vS}")
                valu.extend(Axad(f + 2))
            budget = 2
        else:
            n = tile_n[0]; flush_fm(n - 3)
            q, s = o["p"], o["s"]; kind, x = o["tile"]; D = Dq(n)
            if kind == "N":
                T = Tidx(x, q); A, B = frag(s, x), frag(s, q)
                item = dict(ops=[(PACC(s), D + r, Uq(T) + r) for r in range(4)], need=("U", T), done=((lambda T=T: (deadU.add(T), pump_U())) if s == 15 else None))
            elif kind == "R":
                A, B = Rq(s >> 2), frag(s, q)
                done = None
                if s == 15 and q < 2: done = (lambda q=q: mem.append((f"ds_read_b32 v{U1(q+4)}, v{vU} offset:{2*1024 + 4*q}", ("U1", q + 4))))
                item = dict(ops=[(PACC(s), D + (s & 3), U1(q))], need=("U1", q), done=done)
            else:
                A = B = Rq(x)
                item = dict(ops=[(PACC(4 * x + t), D + t, URR + t) for t in range(4)], need=("URR",), done=None)
            if not cfg.get("nop"): e(f"v_mfma_f32_16x16x32_bf16 {q4('v', D)}, {A}, {B}, 0")
            item.update(n=n, pos=e.pos - 1); fm.append(item); tile_n[0] += 1
            if o["first"] and o["u"] + 1 < len(units):
                _, q2, s2 = units[o["u"] + 1]
                gate = [("G", q2, s2)]; ensure(gate); mem.extend(Prd(q2, s2))
            budget = 2
        nxt = ops[k + 1] if k + 1 < len(ops) else None
        before = len(e.lines)
        bar = nxt and nxt["kind"] == "M" and nxt["k"] == 0 and nxt["f"] in bar_at
        if bar:
            fb = nxt["f"]; pb = bar_at[fb]
            held = [m for m in mem if (m[1] is None or m[1][0] == "P") and gate]
            for m in held: mem.remove(m)
            if gate: e.need(*gate)
            want = [("A", fb, t) for t in range(4)] + [("G", pb + 1, 15)] + nxt["needs"]
            if pb >= 0: want += [("P", pb, s) for s in range(16)]
            if pb == 0: want += [("R", g) for g in range(4)]
            if pb == 1: want += [("U2", 5)]
            ensure(want); e.need(*want)
            if pb == -1: e.need("U1")
            e("s_barrier")
            barriers_done.add(pb)
            mem.extend(held)
            if pb == -1:
                mem.append((f"ds_read_b128 {q4('v', URR)}, v{vU} offset:0", ("URR",)))
                mem.append((f"ds_read_b128 {q4('v', U1(0))}, v{vU} offset:1024", ("U1", 0)))
                for q in range(1, 4): e.tags[("U1", q)] = None
                mem.extend(Prd(units[0][1], units[0][2]))
            pump_U()
            if cfg["stamps"] and pb in cfg["stamp_stages"]: stamp(e, cfg, 3 + cfg["stamp_stages"].index(pb))
        else:
            want = list(gate)
            if nxt and all(t in e.tags for t in nxt["needs"]): want += nxt["needs"]
            e.need(*want)
        if ("U1", 0) in e.tags and e.tags.get(("U1", 1), 0) is None:
            for q in range(1, 4): e.tags[("U1", q)] = e.tags[("U1", 0)]
        while gt and gt[0][0] <= o["t"] and released(gt[0]):
            _, gp, gs = gt.popleft(); gq.append((gp, gs))
        pump_G()
        if len(e.lines) == before: emit_scal(k)
        budget -= emit_gload()
        nm = 0
        while mem and nm < (cfg["nm"] if len(mem) < 5 else 2): budget -= emit_mem(); nm += 1
        if not red_queued and tile_n[0] == ntiles and not fm:
            red_queued = True; extra.extend(red)
        while budget > 0.5:
            if valu: emit_valu()
            elif fm_ready(): emit_fm()
            elif emit_scal(k - 1): pass
            elif extra: emit_extra()
            elif fm and tile_n[0] == ntiles: emit_fm()
            else: break
            budget -= 1
        if nxt and nxt["kind"] == "P": flush_fm(tile_n[0] - 3)
    assert not gt and not gq and gstate[0] is None and not scal and nextU[0] == 21
    while mem: emit_mem()
    while valu: emit_valu()
    flush_fm(1 << 30)
    if not red_queued: extra.extend(red)
    while extra: emit_extra()
    if not cfg.get("pst"): stamp(e, cfg, 6)
    TA = [96, 98, 100, 102]; M = [104, 106, 108, 110]
    ts = range(4)
    for u in range(2):
        for r in (0, 2):
            wf = 68 + 4 * u + r
            x = {t: f"v[{ACC+16*u+4*t+r}:{ACC+16*u+4*t+r+1}]" for t in ts}
            T = {t: f"v[{TA[t]}:{TA[t]+1}]" for t in ts}
            for t in ts: e(f"v_pk_mul_f32 {T[t]}, {x[t]}, {x[t]}")
            for t in ts: e(f"v_pk_fma_f32 {T[t]}, {T[t]}, s[60:61], v[36:37]")
            for t in ts: e(f"v_pk_mul_f32 {T[t]}, {T[t]}, {x[t]}")
            for t in ts: e(f"v_exp_f32 v{TA[t]}, v{TA[t]}\nv_exp_f32 v{TA[t]+1}, v{TA[t]+1}")
            for t in ts: e(f"v_pk_mul_f32 {x[t]}, {x[t]}, v[{wf}:{wf+1}]")
            for t in ts: e(f"v_pk_add_f32 {T[t]}, {T[t]}, v[38:39]")
            for t in ts: e(f"v_rcp_f32 v{TA[t]}, v{TA[t]}\nv_rcp_f32 v{TA[t]+1}, v{TA[t]+1}")
            for t in ts:
                m = f"v[{M[t]}:{M[t]+1}]"
                e(f"v_pk_mul_f32 {m}, {x[t]}, {T[t]}" if (u == 0 and r == 0) else f"v_pk_fma_f32 {m}, {x[t]}, {T[t]}, {m}")
    if cfg.get("tailst"): stamp(e, cfg, 4)
    for t in range(4): e(f"v_add_f32 v{M[t]}, v{M[t]}, v{M[t]+1}")
    e(f"v_lshlrev_b32 v2, 2, v0\ns_lshl_b32 s{sT}, s{sW}, 8\ns_add_u32 s{sT}, s{sT}, {MP_LDS}")
    e(f"v_permlane32_swap_b32 v{M[0]}, v{M[2]}\nv_permlane32_swap_b32 v{M[1]}, v{M[3]}\nv_add_u32 v3, s{sT}, v2\nv_add_f32 v{M[0]}, v{M[0]}, v{M[2]}\nv_add_f32 v{M[1]}, v{M[1]}, v{M[3]}")
    e(f"v_permlane16_swap_b32 v{M[0]}, v{M[1]}\nv_add_f32 v12, v{M[0]}, v{M[1]}")
    e("ds_write_b32 v3, v12")
    e.drain(vm=False)
    e("s_barrier")
    if cfg.get("tailst"): stamp(e, cfg, 5)
    e(f"s_cmp_lg_u32 s{sW}, 0\ns_cbranch_scc1 L_end")
    e(f"v_add_u32 v3, {MP_LDS}, v2")
    for k in range(5): e(f"ds_read_b32 v{12+k}, v3 offset:{256*k}")
    e(f"s_lshl_b32 s{sT}, s2, 7\nv_lshlrev_b32 v2, 1, v0")
    e.drain(vm=False)
    e(f"v_add_f32 v12, v12, v13\nv_add_f32 v14, v14, v15\nv_add_f32 v16, s{sB2}, v16\nv_add_f32 v12, v12, v14\nv_add_f32 v12, v12, v16")
    e("v_cvt_pk_bf16_f32 v12, v12, v12")
    e(f"buffer_store_short v12, v2, s[36:39], s{sT} offen {cfg['outsc']}")
    if cfg["stamps"]:
        stamp(e, cfg, 7)
        e("s_waitcnt lgkmcnt(0)\nv_cmp_eq_u32 vcc, 0, v0\ns_and_saveexec_b64 s[46:47], vcc")
        srd(e, 36, 22, STAMP_OFF + 256 * 64)
        e(f"s_lshl_b32 s{sT}, s2, 6\ns_add_u32 s{sT}, s{sT}, {STAMP_OFF}")
        for k in range(8):
            e(f"v_mov_b32 v2, s{80+2*k}\nv_mov_b32 v3, s{81+2*k}\nbuffer_store_dwordx2 v[2:3], off, s[36:39], s{sT} offset:{8*k}\ns_nop 1")
    e.label("L_end")
    e("s_endpgm")
    e.label("L_prod")
    e.vm_n = e.vm_done = e.lg_n = e.lg_done = 0
    e.release(*keep, f"s{sW1K}", f"s{sBW}", f"v{vU}", f"s{sB2}", *[f"v{48+k}" for k in range(16)])
    e("s_nop 4")
    srd(e, 32, 22, WS_SIZE); srd(e, 68, 20, 256)
    e(f"s_cmp_ge_u32 s{sPG}, {NPROD_W}\ns_cbranch_scc1 L_produ")
    e(f"s_and_b32 s46, s{sW}, 1\ns_lshr_b32 s47, s{sW}, 1\ns_lshl_b32 s48, s{sPG}, 1\ns_add_u32 s47, s47, s48")
    PST[0] = cfg if cfg.get("pst") else None
    prod_issue_w(e)
    if cfg.get("pst"): stamp(e, cfg, 6)
    prod_finish_w(e); e("s_branch L_prodst")
    e.label("L_produ")
    e(f"s_sub_u32 s48, s{sPG}, {NPROD_W}\ns_lshl_b32 s48, s48, 2\ns_add_u32 s48, s48, s{sW}")
    prod_u(e)
    e.label("L_prodst")
    if cfg["pbar"]: e("s_barrier")
    idx_dma(True)
    e("s_waitcnt vmcnt(7)")
    if cfg.get("pst"): stamp(e, cfg, 4)
    e("s_barrier")
    if cfg.get("pst"): stamp(e, cfg, 5)
    e(f"s_cmp_lg_u32 s{sW}, 0\ns_cbranch_scc1 L_nosig")
    if tags:
        e(f"s_lshr_b32 s46, s{sPG}, {TSH}\ns_lshl_b32 s46, s46, 7\ns_and_b32 s47, s{sPG}, {(1<<TSH)-1}\ns_lshl_b32 s47, s47, 2\ns_add_u32 s46, s46, s47\ns_add_u32 s46, s46, {WS_TAG}")
        e("s_lshr_b64 s[48:49], s[64:65], 9\nv_mov_b32 v98, s48\nv_mov_b32 v97, 1\ns_mov_b64 exec, 1\nbuffer_store_dword v98, off, s[32:35], s46 sc0 sc1")
        e("buffer_atomic_add v97, off, s[68:71], 0 sc1\ns_mov_b64 exec, -1")
        e("s_waitcnt vmcnt(2)\ns_branch L_sigdone")
    else:
        e("v_lshlrev_b32 v96, 7, v0\nv_mov_b32 v97, 1\ns_mov_b64 exec, 3\nbuffer_atomic_add v97, v96, s[68:71], 0 offen sc1\ns_mov_b64 exec, -1")
        e("s_waitcnt vmcnt(1)\ns_branch L_sigdone")
    e.label("L_nosig")
    e("s_waitcnt vmcnt(0)")
    e.label("L_sigdone")
    e.vm_n = e.vm_done = 0
    opening("p")
    e.label("L_codeend")
    return e

def kernel(name, e):
    return f".globl {name}\n.p2align 8\n.type {name},@function\n{name}:\n" + e.text()

NOTES = """;
; One workgroup = 64 samples on one CU (4 waves, 512 registers each).  Generated by a scheduling script; hand-designed.
;  * Embedding rows are gathered straight into LDS (buffer_load ... lds), 16 rows per instruction.  Fields 0..95 form 6 fragments of 16
;    (two LDS buffers hold the one in use and the next); fields 96..99 form block R, loaded first and kept packed 4 samples per operand.
;  * Pairwise branch: sum_ij w_p[i,j] <e_i,e_j> over the fragment pairs q <= p and the R pairs, one 16x16x32 MFMA per pair and
;    sample, weighted in f32 by U = w_p + w_p^T (w_p itself on the diagonal pairs).  Fragments 0-4 stay in registers.
;  * MLP: 16x16x32 MFMAs, wave w owns 32 hidden units for all 64 samples; accumulators start from b1; tanh-GELU and the w2 dot in f32.
;  * w1 (transposed into MFMA operand order) and U are built once per launch by 56 of the workgroups and handed over through d_ws:
;    write-through stores, s_waitcnt, barrier, then an arrival count in d_debug that readers check (bounded poll) before loading.
""".rstrip().split("\n")

def build(**kw):
    cfg = dict(stamps=False, codepf=True, stamp_stages=[-1, 1, 4], poll=20, npre=0, g1pre=4, plag=4, pend=[4,4,4,4,0], p0off=1, gend=[4,4,4,4,5], pmap=True, tags=False, pbar=True, spf=None, nm=2, gburst=1, outsc="", order="u")
    cfg.update(kw)
    m = gen_main(cfg)
    sys.stderr.write(f"instructions {sum(m.counts.values())}, padded wait states {m.nops}, waits {m.counts.get('s_waitcnt')}\n")
    return file_text([f"; @launch grid=(256,1,1) block=(256,1,1) lds={LDS_SIZE}"] + NOTES, kernel(KN, m), [descriptor(KN, 512, 256)])
if __name__ == "__main__":
    out = sys.argv[1]; kw = eval("dict(" + (sys.argv[2] if len(sys.argv) > 2 else "") + ")")
    open(out, "w").write(build(**kw))
```
